```python
import torch

def _softmax(x, axis=-1):
    return torch.softmax(x, dim=axis)
def _gelu(x):
    return torch.nn.functional.gelu(x, approximate="tanh")
def _silu(x):
    return torch.nn.functional.silu(x)
def _sigmoid(x):
    return torch.sigmoid(x)
def _layernorm(x, axis=-1, eps=1e-5):
    m = x.mean(dim=axis, keepdim=True)
    v = x.var(dim=axis, keepdim=True, unbiased=False)
    return (x - m) / torch.sqrt(v + eps)
def _scatter_add(tgt, idx, src, axis=0):
    return tgt.clone().index_add_(axis, idx, src)
def _segment_sum(src, seg, n):
    out = torch.zeros((n,) + src.shape[1:], dtype=src.dtype)
    return out.index_add_(0, seg, src)
def _pad(x, pw):
    flat = tuple(v for pair in reversed(pw) for v in pair)
    return torch.nn.functional.pad(x, flat)

kernel_name = 'gated_mix__gqa_block_cached__dense_activation_relu__decode'

def setup_inputs():

    _w = (lambda a: (lambda t: t.to(torch.bfloat16) if t.is_floating_point() else t)(torch.as_tensor(a)))
    def _A_setup():
        B, Sq, D = 4, 1, 448
        Hq, Hkv, Sk, Dh = 16, 8, 4096, 256
        assert Hq % Hkv == 0, (Hq, Hkv)
        return {
            "x": _w((lambda *s: torch.randn(*s, dtype=torch.bfloat16) * 0.05)(B, Sq, D)),
            "k_cache": _w((lambda *s: torch.randn(*s, dtype=torch.bfloat16) * 6.4)(B, Hkv, Sk, Dh)),
            "v_cache": _w((lambda *s: torch.randn(*s, dtype=torch.bfloat16) * 0.4)(B, Hkv, Sk, Dh)),
            "wq": _w((lambda *s: torch.randn(*s, dtype=torch.bfloat16) * 6.4)(D, Hq * Dh) * (D ** -0.5)),
            "wo": _w((lambda *s: torch.randn(*s, dtype=torch.bfloat16) * 0.4)(Hq * Dh, D) * ((Hq * Dh) ** -0.5)),
        }
    _A_in = _A_setup()

    def _B_setup():
        B, S, D, Dff = 4, 1, 448, 1792
        return {
            "x": _w((lambda *s: torch.randn(*s, dtype=torch.bfloat16) * 0.05)(B, S, D)),
            "w1": _w((lambda *s: torch.randn(*s, dtype=torch.bfloat16) * 0.05)(D, Dff)),
            "w2": _w((lambda *s: torch.randn(*s, dtype=torch.bfloat16) * 0.05)(Dff, D)),
        }
    _B_in = _B_setup()

    return {
        "A_x": _A_in["x"],
        "A_k_cache": _A_in["k_cache"],
        "A_v_cache": _A_in["v_cache"],
        "A_wq": _A_in["wq"],
        "A_wo": _A_in["wo"],
        "B_x": _B_in["x"],
        "B_w1": _B_in["w1"],
        "B_w2": _B_in["w2"],
        "gate_w": _w((lambda *s: torch.randn(*s, dtype=torch.bfloat16) * 0.05)(448) * 16.0),
    }

def reference(A_x, A_k_cache, A_v_cache, A_wq, A_wo, B_x, B_w1, B_w2, gate_w):
    def _A_ref(x, k_cache, v_cache, wq, wo):
        B, Sq, D = x.shape
        Hq, Dh = 16, 256
        Hkv = k_cache.shape[1]
        rep = Hq // Hkv
        q = (lambda x, *d: x.permute(*d))((x @ wq).reshape(B, Sq, Hq, Dh), 0, 2, 1, 3)
        k = (lambda x, n, axis: torch.repeat_interleave(x, n, dim=axis))(k_cache, rep, axis=1)
        v = (lambda x, n, axis: torch.repeat_interleave(x, n, dim=axis))(v_cache, rep, axis=1)
        scores = torch.einsum("bhqd,bhkd->bhqk", q, k) * (Dh ** -0.5)
        p = _softmax(scores, axis=-1)
        o = torch.einsum("bhqk,bhkd->bhqd", p, v)
        return (lambda x, *d: x.permute(*d))(o, 0, 2, 1, 3).reshape(B, Sq, Hq * Dh) @ wo

    def _B_ref(x, w1, w2):
        h = torch.einsum("bsd,df->bsf", x, w1)
        zero = torch.zeros_like(h)
        h = torch.maximum(h, zero)
        return torch.einsum("bsf,fd->bsd", h, w2)

    x = A_x
    g = _sigmoid((x * gate_w).sum(-1, keepdims=True))
    a = _A_ref(x, A_k_cache, A_v_cache, A_wq, A_wo)
    b = _B_ref(x, B_w1, B_w2)
    return g * a + (1 - g) * b
```

```python
import re

TRANS = ("v_exp_f32", "v_log_f32", "v_rcp_f32", "v_rsq_f32", "v_sqrt_f32", "v_sin_f32", "v_cos_f32")


def _regs(tok):
    tok = tok.strip()
    neg = tok.lstrip("-")
    if neg.startswith("abs(") or neg.startswith("|"):
        neg = neg.strip("|").replace("abs(", "").rstrip(")")
    m = re.fullmatch(r"([vas])\[(\d+):(\d+)\]", neg)
    if m:
        return [f"{m.group(1)}{i}" for i in range(int(m.group(2)), int(m.group(3)) + 1)]
    m = re.fullmatch(r"([vas])(\d+)", neg)
    if m:
        return [neg]
    if neg in ("vcc", "exec", "m0"):
        return [neg]
    if neg in ("vcc_lo", "vcc_hi"):
        return ["vcc"]
    if neg in ("exec_lo", "exec_hi"):
        return ["exec"]
    return []


class Inst:
    def __init__(self, text):
        self.text = text
        t = text.split(";")[0].strip()
        parts = t.split(None, 1)
        self.op = parts[0]
        rest = parts[1] if len(parts) > 1 else ""
        toks = [x.strip() for x in re.split(r",(?![^\[]*\])", rest)]
        mods = ""
        if toks:
            sp = toks[-1].split(None, 1)
            if len(sp) == 2:
                toks[-1], mods = sp[0], sp[1]
        self.toks, self.mods = toks, mods
        op = self.op
        self.is_mfma = op.startswith("v_mfma")
        self.is_valu = op.startswith("v_") and not self.is_mfma
        self.is_dpp = any(k in mods for k in ("quad_perm", "row_ror", "row_shr", "row_shl", "row_bcast", "row_mirror"))
        self.is_trans = op.replace("_e32", "").replace("_e64", "") in TRANS
        self.is_vmem = op.startswith("buffer_") or op.startswith("global_")
        self.is_ds = op.startswith("ds_")
        self.is_lds_dma = self.is_vmem and re.search(r"\blds\b", mods) is not None
        self.dst, self.src = [], []
        R = [_regs(x) for x in toks]
        flat = lambda xs: [r for x in xs for r in x]
        if self.is_mfma:
            self.dst = R[0]
            self.srcA, self.srcB, self.srcC = R[1], R[2], R[3]
            self.src = R[1] + R[2] + R[3]
        elif self.is_valu:
            if op.startswith("v_cmpx"):
                self.dst, self.src = R[0] + ["exec"], flat(R[1:])
            elif op.startswith("v_cmp"):
                self.dst, self.src = R[0], flat(R[1:])
            elif op.startswith("v_permlane16_swap") or op.startswith("v_permlane32_swap"):
                self.dst = R[0] + R[1]
                self.src = R[0] + R[1]
            elif op.startswith(("v_fmac", "v_dot2c", "v_writelane")):
                self.dst, self.src = R[0], flat(R)
            elif op.startswith(("v_add_co", "v_addc_co", "v_sub_co")):
                self.dst, self.src = R[0] + R[1], flat(R[2:])
            else:
                self.dst, self.src = R[0], flat(R[1:])
                if op.startswith("v_cndmask") and len(toks) == 3:
                    self.src.append("vcc")
                if self.is_dpp:
                    self.dpp_src = R[1]
        elif self.is_vmem:
            if "store" in op or "atomic" in op:
                self.src = flat(R)
                self.store_data = R[0]
            elif self.is_lds_dma:
                self.src = flat(R) + ["m0"]
            else:
                self.dst, self.src = R[0], flat(R[1:])
        elif self.is_ds:
            if op.startswith("ds_read") or op.startswith("ds_bpermute") or op.startswith("ds_swizzle"):
                self.dst, self.src = R[0], flat(R[1:])
            else:
                self.src = flat(R)
        elif op.startswith("s_"):
            if op.startswith(("s_cmp", "s_cbranch", "s_branch", "s_waitcnt", "s_barrier", "s_nop", "s_sleep", "s_endpgm", "s_setprio")):
                self.src = flat(R)
            else:
                self.dst, self.src = (R[0] if R else []), flat(R[1:])

    def states(self):
        if self.op == "s_nop":
            return int(self.toks[0], 0) + 1
        return 1


class Gen:
    def __init__(self):
        self.items = []
        self.vm = []
        self.nops = 0

    def __call__(self, text):
        for line in text.strip().split("\n"):
            line = line.strip()
            if not line:
                continue
            if line.startswith(";"):
                self.items.append(("c", line))
            elif line.endswith(":"):
                self.items.append(("l", line[:-1]))
            else:
                self.items.append(("i", Inst(line)))

    def label(self, name):
        self.items.append(("l", name))

    def comment(self, text):
        self.items.append(("c", "; " + text))

    def vmem(self, text, tag=None, counted=True):
        self(text)
        if counted:
            self.vm.append(tag)

    def after(self, tag):
        idx = max(i for i, t in enumerate(self.vm) if t == tag)
        return len(self.vm) - 1 - idx

    def wait_vm(self, tag, extra=0):
        if tag in getattr(self, "virtual", ()):
            return None
        n = min(self.after(tag) + extra, 63)
        self(f"s_waitcnt vmcnt({n})")
        return n

    def finalize(self):
        out = []
        clock = 0
        kinds = ("valu_w", "trans_w", "mfma_w", "mfma_c_r", "valu_sgpr_w", "store_r", "m0_w", "valu_exec_w")
        st = {k: {} for k in kinds}
        mfma_dst = {}
        snaps = {}

        def ages():
            return {k: {r: clock - c for r, c in st[k].items()} for k in kinds}

        for kind, it in self.items:
            if kind == "c":
                out.append("    " + it)
                continue
            if kind == "l":
                for sn in snaps.pop(it, []):
                    for k in kinds:
                        for r, a in sn[k].items():
                            cur = st[k].get(r)
                            if cur is None or clock - cur > a:
                                st[k][r] = clock - a
                out.append(it + ":")
                continue
            ins = it
            need = 0

            def req(k, regs, dist):
                nonlocal need
                for r in regs:
                    c = st[k].get(r)
                    if c is not None:
                        need = max(need, dist - (clock - c))

            vsrc = [r for r in ins.src if r[0] in "va" and r != "vcc"]
            vdst = [r for r in ins.dst if r[0] in "va" and r != "vcc"]
            ssrc = [r for r in ins.src if r[0] == "s" or r in ("vcc", "exec", "m0")]
            if ins.is_mfma:
                req("valu_w", ins.src, 2)
                req("mfma_w", ins.srcA + ins.srcB, 8)
                for r in ins.srcC:
                    if r in st["mfma_w"] and mfma_dst.get(r) != tuple(ins.srcC):
                        req("mfma_w", [r], 6)
                for r in ins.dst:
                    if r in st["mfma_w"] and mfma_dst.get(r) != tuple(ins.dst):
                        req("mfma_w", [r], 6)
                req("valu_exec_w", ["exec"], 4)
            elif ins.is_valu:
                req("mfma_w", vsrc + vdst, 8)
                req("mfma_c_r", vdst, 3)
                req("store_r", vdst, 2)
                if not ins.is_trans:
                    req("trans_w", vsrc, 1)
                if ins.is_dpp:
                    req("valu_w", ins.dpp_src, 2)
                    req("valu_exec_w", ["exec"], 5)
                if ins.op.startswith("v_permlane"):
                    req("valu_w", vsrc, 2)
                    req("valu_exec_w", ["exec"], 4)
                if ins.op.startswith(("v_readlane", "v_readfirstlane")):
                    req("valu_w", vsrc, 1)
                    req("valu_exec_w", ["exec"], 4)
                    req("valu_sgpr_w", [r for r in ssrc], 4)
                elif ins.op.startswith("v_writelane"):
                    req("valu_sgpr_w", ssrc, 4)
                    req("valu_exec_w", ["exec"], 4)
                else:
                    req("valu_sgpr_w", ssrc, 2)
            elif ins.is_vmem or ins.is_ds:
                req("mfma_w", vsrc + vdst, 8)
                req("valu_sgpr_w", ssrc, 5)
                req("store_r", vdst, 1)
                if ins.is_lds_dma:
                    req("m0_w", ["m0"], 1)
            else:
                req("valu_sgpr_w", [r for r in ssrc if r != "exec"], 1)
                req("valu_exec_w", [r for r in ssrc if r == "exec"], 5)
            while need > 0:
                k = min(need, 16)
                out.append(f"    s_nop {k-1}")
                self.nops += 1
                clock += k
                need -= k
            out.append("    " + ins.text)
            clock += ins.states()
            stamp = clock
            if ins.is_mfma:
                for r in ins.dst:
                    st["mfma_w"][r] = stamp
                    mfma_dst[r] = tuple(ins.dst)
                    st["valu_w"].pop(r, None)
                for r in ins.srcC:
                    st["mfma_c_r"][r] = stamp
            elif ins.is_valu:
                for r in ins.dst:
                    if r == "exec":
                        st["valu_exec_w"][r] = stamp
                        st["valu_sgpr_w"][r] = stamp
                    elif r[0] == "s" or r == "vcc":
                        st["valu_sgpr_w"][r] = stamp
                    else:
                        st["valu_w"][r] = stamp
                        st["mfma_w"].pop(r, None)
                        if ins.is_trans:
                            st["trans_w"][r] = stamp
                        else:
                            st["trans_w"].pop(r, None)
            elif ins.is_vmem:
                if "store" in ins.op and ("x4" in ins.op or "x3" in ins.op):
                    for r in ins.store_data:
                        st["store_r"][r] = stamp
                for r in ins.dst:
                    st["valu_w"].pop(r, None); st["trans_w"].pop(r, None); st["mfma_w"].pop(r, None)
            elif ins.is_ds:
                for r in ins.dst:
                    st["valu_w"].pop(r, None); st["trans_w"].pop(r, None); st["mfma_w"].pop(r, None)
            else:
                for r in ins.dst:
                    if r == "m0":
                        st["m0_w"][r] = stamp
                    st["valu_sgpr_w"].pop(r, None)
                    if r == "exec":
                        st["valu_exec_w"].pop(r, None)
            if ins.op.startswith(("s_cbranch", "s_branch")):
                snaps.setdefault(ins.toks[0], []).append(ages())
        return "\n".join(out) + "\n"
```

```python
import argparse, sys
from asmlib import Gen

NAME = "gated_mix__gqa_block_cached__dense_activation_relu__decode"

WS_EP = 0x0
WS_Q = 0x1000
WS_ML = 0x20000
WS_O = 0x40000
WS_Y = 0x200000
WS_DBG = 0x800000
WS_T = 0xFF00000

L_QP = 0
L_HP = L_QP + 2048
L_QB = L_HP + 1024
L_HB = L_QB + 1024
L_MX = L_HB + 128
L_LP = L_MX + 128
L_OB = L_LP + 128
L_AC = L_OB + 128
L_WO = L_AC + 8192
L_W2 = L_WO + 57344
LDS_BYTES = L_W2 + 28672

sX, sWQ, sW1, sK, sV, sWO, sW2, sG, sWS, sOUT = 28, 32, 36, 40, 44, 48, 52, 56, 60, 64
sHKV, sS, sB, sW, sTag, sP, sGrp = 68, 69, 70, 71, 72, 73, 74
sT0, sT1, sT2, sT3, sT4 = 75, 76, 77, 78, 79
sKoff, sVoff, sC, sSelLo, sSelHi, sCnt = 80, 81, 82, 83, 84, 85
sG_, sOMG = 94, 95
sDmaG, sDmaL = 96, 97


def srd(b):
    return f"s[{b}:{b+3}]"


def vr(b, n=4):
    return f"v[{b}:{b+n-1}]"


def ar(b, n=4):
    return f"a[{b}:{b+n-1}]"


vTid, vL, vKoff, vVoff = 0, 1, 2, 3
vPM = 4
vQ = 8
vAcc0, vAcc1, vLacc, vOnes = 16, 20, 24, 28
vS = 32
vD = 64
vA = 80
vWq, vW1, vX, vL16, vM, vT0, vT1, vStamp = 88, 89, 90, 91, 92, 93, 94, 95
vP = 96
vWQd, vW1d, vXd, vMQ, vMH, vXdup, vAq, vAh, vDq, vDh, vGx, vGw = 128, 184, 212, 220, 224, 226, 228, 236, 240, 244, 248, 252
aWO, aW2 = 128, 184


def build(cfg):
    g = Gen()
    dbg = cfg.debug
    kvf = cfg.kvflags
    wf = cfg.wflags
    nstamp = [0]
    stamp_names = []

    def stamp(name):
        if not dbg:
            return
        g(f"s_memrealtime s[98:99]\ns_waitcnt lgkmcnt(0)\nv_writelane_b32 v{vStamp}, s98, {nstamp[0]}")
        stamp_names.append(name)
        nstamp[0] += 1

    g("s_cmp_ge_u32 s2, 256")
    g("s_cbranch_scc1 L_exit")
    g("s_load_dwordx16 s[4:19], s[0:1], 0")
    g("s_load_dwordx8 s[20:27], s[0:1], 64")
    if dbg:
        g(f"v_mov_b32 v{vStamp}, 0")
        g("s_memrealtime s[100:101]")
    g(f"""
    s_and_b32 s{sHKV}, s2, 7
    s_lshr_b32 s{sT0}, s2, 3
    s_and_b32 s{sS}, s{sT0}, 7
    s_lshr_b32 s{sB}, s{sT0}, 3
    s_lshl_b32 s{sP}, s{sHKV}, 3
    s_add_u32 s{sP}, s{sP}, s{sS}
    s_lshl_b32 s{sGrp}, s{sB}, 3
    s_add_u32 s{sGrp}, s{sGrp}, s{sHKV}
    v_lshrrev_b32 v{vT0}, 6, v{vTid}
    v_and_b32 v{vL}, 63, v{vTid}
    v_readfirstlane_b32 s{sW}, v{vT0}
    v_lshrrev_b32 v{vT1}, 3, v{vL}
    v_and_b32 v{vP}, 7, v{vL}
    v_lshlrev_b32 v{vL16}, 4, v{vL}
    """)
    g(f"""
    v_mul_u32_u24 v{vP+1}, 14, v{vT1}
    s_mul_i32 s{sT1}, s{sW}, 112
    v_add_u32 v{vP+1}, s{sT1}, v{vP+1}
    v_lshlrev_b32 v{vX}, 1, v{vP+1}
    v_lshlrev_b32 v{vWq}, 13, v{vP+1}
    v_lshl_add_u32 v{vWq}, v{vP}, 4, v{vWq}
    v_mul_u32_u24 v{vW1}, 3584, v{vP+1}
    v_lshl_add_u32 v{vW1}, v{vP}, 3, v{vW1}
    """)
    g(f"""
    v_bfe_u32 v{vP+2}, v{vL}, 2, 2
    v_lshrrev_b32 v{vP+3}, 4, v{vL}
    v_and_b32 v{vP+4}, 3, v{vL}
    v_and_b32 v{vP+5}, 15, v{vL}
    s_lshl_b32 s{sT2}, s{sW}, 16
    v_lshlrev_b32 v{vKoff}, 9, v{vP+2}
    v_lshl_add_u32 v{vKoff}, v{vP+3}, 6, v{vKoff}
    v_lshl_add_u32 v{vKoff}, v{vP+4}, 4, v{vKoff}
    v_add_u32 v{vKoff}, s{sT2}, v{vKoff}
    v_lshlrev_b32 v{vVoff}, 9, v{vP+3}
    v_lshl_add_u32 v{vVoff}, v{vP+5}, 4, v{vVoff}
    v_add_u32 v{vVoff}, s{sT2}, v{vVoff}
    """)
    g("s_waitcnt lgkmcnt(0)")
    if dbg:
        g(f"v_writelane_b32 v{vStamp}, s100, 63")

    def mk(dst, ptr, off_sgpr, size):
        if off_sgpr is None:
            g(f"s_mov_b32 s{dst}, s{ptr}\ns_mov_b32 s{dst+1}, s{ptr+1}")
        else:
            g(f"s_add_u32 s{dst}, s{ptr}, s{off_sgpr}\ns_addc_u32 s{dst+1}, s{ptr+1}, 0")
        if size is not None:
            g(f"s_mov_b32 s{dst+2}, {size}")
        g(f"s_mov_b32 s{dst+3}, 0x20000")

    g(f"s_mul_i32 s{sT0}, s{sB}, 896")
    mk(sX, 4, sT0, 896)
    g(f"s_lshl_b32 s{sT0}, s{sP}, 7")
    mk(sWQ, 10, sT0, None)
    g(f"s_sub_u32 s{sWQ+2}, 3670016, s{sT0}")
    g(f"s_lshl_b32 s{sT0}, s{sGrp}, 21\ns_lshl_b32 s{sT1}, s{sS}, 18\ns_add_u32 s{sT0}, s{sT0}, s{sT1}")
    mk(sK, 6, sT0, 262144)
    mk(sV, 8, sT0, 262144)

    kl = [0]

    def kv_load():
        k = kl[0]
        if k >= 128:
            return
        kl[0] += 1
        isv = k >= 64
        kk = k - 64 if isv else k
        i, t = kk >> 1, kk & 1
        so = sVoff if isv else sKoff
        if kk % 4 == 0:
            if kk == 0:
                g(f"s_mov_b32 s{so}, 0")
            else:
                g(f"s_add_u32 s{so}, s{so}, 4096")
        imm = (i & 1) * 2048 + t * 256
        if not isv:
            dst, va, sr = ar(4 * kk), vKoff, sK
        else:
            dst = vr(128 + 4 * kk) if kk < 32 else ar(4 * (kk - 32))
            va, sr = vVoff, sV
        g.vmem(f"buffer_load_dwordx4 {dst}, v{va}, {srd(sr)}, s{so} offen offset:{imm} {kvf}", ("kv", k))

    g.vmem(f"buffer_load_dwordx4 {vr(vXd)}, v{vX}, {srd(sX)}, 0 offen", "x")
    g.vmem(f"buffer_load_dwordx3 v[{vXd+4}:{vXd+6}], v{vX}, {srd(sX)}, 0 offen offset:16", "x")
    g(f"s_mov_b32 s{sT3}, 0")
    for i in range(14):
        g.vmem(f"buffer_load_dwordx4 {vr(vWQd+4*i)}, v{vWq}, {srd(sWQ)}, s{sT3} offen {wf}", ("wq", i))
        if i < 13:
            g(f"s_add_u32 s{sT3}, s{sT3}, 8192")
        for _ in range(cfg.ilvA[i]):
            kv_load()
    stamp("A_issued")

    g(f"s_lshl_b32 s{sT0}, s{sB}, 8")
    g(f"s_load_dword s{sTag}, s[26:27], s{sT0}")
    g(f"s_mul_i32 s{sT0}, s{sHKV}, 7\ns_add_u32 s{sT0}, s{sT0}, s{sS}")
    g(f"s_lshl_b32 s{sT1}, s{sT0}, 6")
    mk(sW1, 16, sT1, None)
    g(f"s_sub_u32 s{sW1+2}, 1605632, s{sT1}")
    g(f"s_mul_i32 s{sT1}, s{sT0}, 28672")
    mk(sW2, 18, sT1, 28672)
    g(f"s_cmp_eq_u32 s{sS}, 7\ns_cselect_b32 s{sW1+2}, 0, s{sW1+2}\ns_cselect_b32 s{sW2+2}, 0, s{sW2+2}")
    g(f"s_mul_i32 s{sT1}, s{sP}, 57344")
    mk(sWO, 12, sT1, 57344)
    mk(sG, 20, None, 896)
    mk(sWS, 26, None, 0x10000000 if dbg else 0x400000)
    mk(sOUT, 22, None, 3584)
    g(f"""
    s_mov_b32 s{sC}, 0x3db8aa3b
    s_mov_b32 s{sSelLo}, 0x01000100
    s_mov_b32 s{sSelHi}, 0x03020302
    """)
    half = vT0
    g(f"""
    v_and_b32 v{half}, 1, v{vL}
    v_lshlrev_b32 v{half}, 4, v{half}
    v_mov_b32 v{vT1}, 0xffff
    v_lshlrev_b32 v{half}, v{half}, v{vT1}
    v_bfe_u32 v{vP}, v{vL}, 1, 2
    v_bfe_u32 v{vP+1}, v{vL}, 1, 1
    v_bfe_u32 v{vP+2}, v{vL}, 3, 1
    v_lshl_add_u32 v{vP+2}, v{vP+2}, 1, v{vP+1}
    """)
    for r in range(4):
        g(f"v_cmp_eq_u32 s[{86+2*(r&3)}:{87+2*(r&3)}], {r}, v{vP}")
    for r in range(4):
        g(f"v_cndmask_b32 v{vMQ+r}, 0, v{half}, s[{86+2*r}:{87+2*r}]")
    for r in range(2):
        g(f"v_cmp_eq_u32 s[{86+2*r}:{87+2*r}], {r}, v{vP+1}")
    for r in range(2):
        g(f"v_cndmask_b32 v{vMH+r}, 0, v{half}, s[{86+2*r}:{87+2*r}]")
    for r in range(4):
        g(f"v_cmp_eq_u32 s[{86+2*r}:{87+2*r}], {r}, v{vP+2}")
    for r in range(4):
        g(f"v_cndmask_b32 v{vPM+r}, 0, v{half}, s[{86+2*r}:{87+2*r}]")
    for r in range(4):
        g(f"v_mov_b32 v{vOnes+r}, 0x3f803f80")
    g("s_waitcnt lgkmcnt(0)")
    g(f"s_add_u32 s{sTag}, s{sTag}, 0x9e3779b9")

    def xdup(i):
        sel = sSelHi if i & 1 else sSelLo
        r = vXd + (i >> 1)
        g(f"v_perm_b32 v{vXdup}, v{r}, v{r}, s{sel}")

    def prep_q(i):
        xdup(i)
        for r in range(4):
            g(f"v_and_b32 v{vAq + 4*(i&1) + r}, v{vXdup}, v{vMQ+r}")

    g.wait_vm("x")
    prep_q(0)
    for i in range(14):
        if i < 13:
            prep_q(i + 1)
        g.wait_vm(("wq", i))
        c = "0" if i == 0 else vr(vDq)
        g(f"v_mfma_f32_16x16x32_bf16 {vr(vDq)}, {vr(vAq + 4*(i&1))}, {vr(vWQd + 4*i)}, {c}")
    stamp("wq_landed")
    g(f"""
    v_lshrrev_b32 v{vT0}, 5, v{vL}
    s_lshl_b32 s{sT0}, s{sW}, 1
    v_add_u32 v{vT0}, s{sT0}, v{vT0}
    v_lshlrev_b32 v{vT0}, 8, v{vT0}
    v_and_b32 v{vT1}, 7, v{vL}
    v_lshl_add_u32 v{vT0}, v{vT1}, 5, v{vT0}
    v_bfe_u32 v{vT1}, v{vL}, 4, 1
    v_lshl_add_u32 v{vT0}, v{vT1}, 4, v{vT0}
    s_mov_b32 exec_lo, 0x00ff00ff
    s_mov_b32 exec_hi, 0xff00ff00
    ds_write_b128 v{vT0}, {vr(vDq)} offset:{L_QP}
    s_mov_b64 exec, -1
    s_waitcnt lgkmcnt(0)
    s_barrier
    """)
    g(f"s_cmp_lg_u32 s{sW}, 0\ns_cbranch_scc1 L_qpub_done")
    g(f"s_mov_b64 exec, 0xffff")
    for k in range(8):
        g(f"ds_read_b128 {vr(vP+4*k)}, v{vL16} offset:{L_QP + 256*k}")
    g(f"s_lshl_b32 s{sT0}, s{sGrp}, 11\ns_lshl_b32 s{sT1}, s{sS}, 8\ns_add_u32 s{sT0}, s{sT0}, s{sT1}\ns_add_u32 s{sT0}, s{sT0}, {WS_Q}")
    g(f"v_mov_b32 v{vD+1}, s{sTag}\nv_mov_b32 v{vD+3}, s{sTag}")
    g("s_waitcnt lgkmcnt(0)")
    for k in (1, 3, 5, 7):
        for j in range(4):
            g(f"v_add_f32 v{vP+4*(k-1)+j}, v{vP+4*(k-1)+j}, v{vP+4*k+j}")
    for k in (2, 6):
        for j in range(4):
            g(f"v_add_f32 v{vP+4*(k-2)+j}, v{vP+4*(k-2)+j}, v{vP+4*k+j}")
    for j in range(4):
        g(f"v_add_f32 v{vP+j}, v{vP+j}, v{vP+16+j}")
    g(f"v_cvt_pk_bf16_f32 v{vD}, v{vP}, v{vP+1}\nv_cvt_pk_bf16_f32 v{vD+2}, v{vP+2}, v{vP+3}")
    g.vmem(f"buffer_store_dwordx4 {vr(vD)}, v{vL16}, {srd(sWS)}, s{sT0} offen sc1", counted=False)
    g("s_mov_b64 exec, -1")
    g.label("L_qpub_done")
    stamp("q_published")

    ops = []
    for i in range(14):
        ops.append(("w1", i))
    ops.append(("gate", 0))
    for k in range(14):
        ops.append(("dwo", k))
    for k in range(7):
        ops.append(("dw2", k))
    g(f"s_mov_b32 s{sT3}, 0")
    g(f"s_mul_i32 s{sDmaG}, s{sW}, 14336")
    g(f"s_mul_i32 s{sDmaL}, s{sW}, 7168")
    polled = False

    def emit_poll():
        g.comment("wave 0 polls the group's q granules, queued behind the loads issued so far")
        g(f"s_cmp_lg_u32 s{sW}, 0\ns_cbranch_scc1 L_nopoll")
        g(f"s_lshl_b32 s{sT4}, s{sGrp}, 11\ns_add_u32 s{sT4}, s{sT4}, {WS_Q}")
        g.vmem(f"buffer_load_dwordx4 {vr(vP)}, v{vL16}, {srd(sWS)}, s{sT4} offen sc1", counted=False)
        g.vmem(f"buffer_load_dwordx4 {vr(vP+4)}, v{vL16}, {srd(sWS)}, s{sT4} offen offset:1024 sc1", counted=False)
        g.label("L_nopoll")

    n_after_poll = [None]
    for n, (kind, i) in enumerate(ops):
        if n == cfg.pollpos:
            emit_poll()
            n_after_poll[0] = len(g.vm)
        if kind == "w1":
            g.vmem(f"buffer_load_dwordx2 v[{vW1d+2*i}:{vW1d+2*i+1}], v{vW1}, {srd(sW1)}, s{sT3} offen {wf}", ("w1", i))
            if i < 13:
                g(f"s_add_u32 s{sT3}, s{sT3}, 3584")
        elif kind == "gate":
            g.vmem(f"buffer_load_dwordx4 {vr(vGx)}, v{vL16}, {srd(sX)}, 0 offen", "gate")
            g.vmem(f"buffer_load_dwordx4 {vr(vGw)}, v{vL16}, {srd(sG)}, 0 offen", "gate")
        elif kind == "dwo":
            if i % 4 == 0:
                g(f"s_add_u32 s{sT2}, s{sDmaG}, {i*1024}\ns_add_u32 m0, s{sT2}, {L_WO}")
            g.vmem(f"buffer_load_dwordx4 v{vL16}, {srd(sWO)}, s{sT2} offen offset:{(i%4)*1024} {wf} lds", "dma")
        elif kind == "dw2":
            if i % 4 == 0:
                g(f"s_add_u32 s{sT2}, s{sDmaL}, {i*1024}\ns_add_u32 m0, s{sT2}, {L_W2}")
            g.vmem(f"buffer_load_dwordx4 v{vL16}, {srd(sW2)}, s{sT2} offen offset:{(i%4)*1024} {wf} lds", "dma")
        for _ in range(cfg.ilvB[n]):
            if kl[0] < cfg.P:
                kv_load()
    while kl[0] < cfg.P:
        kv_load()
    assert n_after_poll[0] is not None
    stamp("B_issued")

    def prep_h(i):
        xdup(i)
        for r in range(2):
            g(f"v_and_b32 v{vAh + 2*(i&1) + r}, v{vXdup}, v{vMH+r}")

    prep_h(0)
    for i in range(14):
        if i < 13:
            prep_h(i + 1)
        if i in (0, 6, 13):
            g.wait_vm(("w1", {0: 5, 6: 12, 13: 13}[i]))
        c = "0" if i == 0 else vr(vDh)
        g(f"v_mfma_f32_16x16x16_bf16 {vr(vDh)}, v[{vAh+2*(i&1)}:{vAh+2*(i&1)+1}], v[{vW1d+2*i}:{vW1d+2*i+1}], {c}")
    g(f"""
    v_lshrrev_b32 v{vT0}, 5, v{vL}
    s_lshl_b32 s{sT0}, s{sW}, 1
    v_add_u32 v{vT0}, s{sT0}, v{vT0}
    v_lshlrev_b32 v{vT0}, 7, v{vT0}
    v_and_b32 v{vT1}, 7, v{vL}
    v_lshl_add_u32 v{vT0}, v{vT1}, 4, v{vT0}
    s_mov_b32 exec_lo, 0x000000ff
    s_mov_b32 exec_hi, 0x0000ff00
    ds_write_b128 v{vT0}, {vr(vDh)} offset:{L_HP}
    s_mov_b64 exec, -1
    """)

    g.wait_vm("gate")
    acc = vP + 8
    for r in range(4):
        a, b2, c2, d2 = vP + 9, vP + 10, vP + 11, vP + 12
        g(f"""
        v_lshlrev_b32 v{a}, 16, v{vGx+r}
        v_and_b32 v{b2}, 0xffff0000, v{vGx+r}
        v_lshlrev_b32 v{c2}, 16, v{vGw+r}
        v_and_b32 v{d2}, 0xffff0000, v{vGw+r}
        v_mul_f32 v{a}, v{a}, v{c2}
        v_mul_f32 v{b2}, v{b2}, v{d2}
        v_cvt_pk_bf16_f32 v{a}, v{a}, v{b2}
        v_and_b32 v{b2}, 0xffff0000, v{a}
        v_lshlrev_b32 v{a}, 16, v{a}
        """)
        if r == 0:
            g(f"v_add_f32 v{acc}, v{a}, v{b2}")
        else:
            g(f"v_add_f32 v{acc}, v{acc}, v{a}\nv_add_f32 v{acc}, v{acc}, v{b2}")
    for sh in (8, 4, 2, 1):
        g(f"v_add_f32_dpp v{acc}, v{acc}, v{acc} row_ror:{sh} row_mask:0xf bank_mask:0xf")
    g(f"""
    v_readlane_b32 s{sT0}, v{acc}, 0
    v_readlane_b32 s{sT1}, v{acc}, 16
    v_readlane_b32 s{sT2}, v{acc}, 32
    v_readlane_b32 s{sT3}, v{acc}, 48
    v_mov_b32 v{acc}, s{sT0}
    v_add_f32 v{acc}, s{sT1}, v{acc}
    v_add_f32 v{acc}, s{sT2}, v{acc}
    v_add_f32 v{acc}, s{sT3}, v{acc}
    v_cvt_pk_bf16_f32 v{acc}, v{acc}, v{acc}
    v_and_b32 v{acc}, 0xffff0000, v{acc}
    v_mul_f32 v{acc}, 0xbfb8aa3b, v{acc}
    v_exp_f32 v{acc}, v{acc}
    v_add_f32 v{acc}, 1.0, v{acc}
    v_rcp_f32 v{acc}, v{acc}
    v_cvt_pk_bf16_f32 v{acc}, v{acc}, v{acc}
    v_and_b32 v{acc}, 0xffff0000, v{acc}
    v_sub_f32 v{acc+1}, 1.0, v{acc}
    v_cvt_pk_bf16_f32 v{acc+1}, v{acc+1}, v{acc+1}
    v_and_b32 v{acc+1}, 0xffff0000, v{acc+1}
    v_readfirstlane_b32 s{sG_}, v{acc}
    v_readfirstlane_b32 s{sOMG}, v{acc+1}
    """)

    g(f"s_cmp_lg_u32 s{sW}, 0\ns_cbranch_scc1 L_qwait_done")
    n = min(len(g.vm) - n_after_poll[0], 63)
    g(f"s_waitcnt vmcnt({n})")
    g(f"s_mov_b32 s{sCnt}, {cfg.spin}")
    g.label("L_qcheck")
    for r in (1, 3, 5, 7):
        g(f"v_cmpx_eq_u32 vcc, s{sTag}, v{vP+r}")
    g("s_cmp_eq_u64 exec, -1")
    g("s_mov_b64 exec, -1")
    g("s_cbranch_scc1 L_qok")
    g(f"s_sub_u32 s{sCnt}, s{sCnt}, 1\ns_cbranch_scc1 L_qok")
    g("s_sleep 2")
    g.vmem(f"buffer_load_dwordx4 {vr(vP)}, v{vL16}, {srd(sWS)}, s{sT4} offen sc1", counted=False)
    g.vmem(f"buffer_load_dwordx4 {vr(vP+4)}, v{vL16}, {srd(sWS)}, s{sT4} offen offset:1024 sc1", counted=False)
    g("s_waitcnt vmcnt(0)")
    g("s_branch L_qcheck")
    g.label("L_qok")
    g(f"v_lshlrev_b32 v{vT0}, 3, v{vL}")
    g(f"v_add_u32 v{vT0}, {L_QB}, v{vT0}")
    g(f"ds_write2_b32 v{vT0}, v{vP}, v{vP+2} offset0:0 offset1:1")
    g(f"ds_write2_b32 v{vT0}, v{vP+4}, v{vP+6} offset0:128 offset1:129")
    g.label("L_qwait_done")
    g("s_waitcnt lgkmcnt(0)\ns_barrier")
    stamp("q_ready")

    g(f"""
    v_bfe_u32 v{vT0}, v{vL}, 2, 1
    v_lshlrev_b32 v{vT0}, 9, v{vT0}
    v_lshrrev_b32 v{vT1}, 4, v{vL}
    v_lshl_add_u32 v{vT0}, v{vT1}, 6, v{vT0}
    v_and_b32 v{vT1}, 3, v{vL}
    v_lshl_add_u32 v{vT0}, v{vT1}, 4, v{vT0}
    ds_read_b128 {vr(vQ)}, v{vT0} offset:{L_QB}
    ds_read_b128 {vr(vQ+4)}, v{vT0} offset:{L_QB+256}
    """)
    g(f"s_cmp_lg_u32 s{sW}, 1\ns_cbranch_scc1 L_h_done")
    g("s_mov_b64 exec, 0xff")
    for k in range(8):
        g(f"ds_read_b128 {vr(vP+4*k)}, v{vL16} offset:{L_HP + 128*k}")
    g("s_waitcnt lgkmcnt(0)")
    for k in (1, 3, 5, 7):
        for j in range(4):
            g(f"v_add_f32 v{vP+4*(k-1)+j}, v{vP+4*(k-1)+j}, v{vP+4*k+j}")
    for k in (2, 6):
        for j in range(4):
            g(f"v_add_f32 v{vP+4*(k-2)+j}, v{vP+4*(k-2)+j}, v{vP+4*k+j}")
    for j in range(4):
        g(f"v_add_f32 v{vP+j}, v{vP+j}, v{vP+16+j}")
    for j in range(4):
        g(f"v_max_f32 v{vP+j}, 0, v{vP+j}")
    g(f"""
    v_cvt_pk_bf16_f32 v{vP+4}, v{vP}, v{vP+1}
    v_cvt_pk_bf16_f32 v{vP+5}, v{vP+2}, v{vP+3}
    v_lshlrev_b32 v{vT0}, 3, v{vL}
    ds_write_b64 v{vT0}, v[{vP+4}:{vP+5}] offset:{L_HB}
    s_mov_b64 exec, -1
    """)
    g.label("L_h_done")
    g("s_waitcnt lgkmcnt(0)")

    def qk_reduce(i):
        d = vD + 4 * (i & 3)
        s = vS + i
        g(f"v_mov_b32_dpp v{s}, v{d} quad_perm:[0,0,0,0] row_mask:0xf bank_mask:0xf")
        for c in (1, 2, 3):
            g(f"v_add_f32_dpp v{s}, v{d+c}, v{s} quad_perm:[{c},{c},{c},{c}] row_mask:0xf bank_mask:0xf")
        if i == 0:
            g(f"v_mov_b32 v{vM}, v{s}")
        else:
            g(f"v_max_f32 v{vM}, v{vM}, v{s}")

    for i in range(32):
        g.wait_vm(("kv", 2 * i + 1))
        d = vr(vD + 4 * (i & 3))
        g(f"v_mfma_f32_16x16x32_bf16 {d}, {ar(8*i)}, {vr(vQ)}, 0")
        g(f"v_mfma_f32_16x16x32_bf16 {d}, {ar(8*i+4)}, {vr(vQ+4)}, {d}")
        if i > 0:
            qk_reduce(i - 1)
        kv_load()
        kv_load()
    qk_reduce(31)
    stamp("qk_done")
    g(f"""
    v_mov_b32 v{vT0}, v{vM}
    v_permlane32_swap_b32 v{vM}, v{vT0}
    v_max_f32 v{vM}, v{vM}, v{vT0}
    v_mov_b32 v{vT0}, v{vM}
    v_permlane16_swap_b32 v{vM}, v{vT0}
    v_max_f32 v{vM}, v{vM}, v{vT0}
    v_bfe_u32 v{vT0}, v{vL}, 2, 1
    v_lshlrev_b32 v{vT1}, 4, v{vT0}
    s_lshl_b32 s{sT0}, s{sW}, 2
    v_add_u32 v{vT0}, s{sT0}, v{vT1}
    s_mov_b64 exec, 0x11
    ds_write_b32 v{vT0}, v{vM} offset:{L_MX}
    s_mov_b64 exec, -1
    s_waitcnt lgkmcnt(0)
    s_barrier
    ds_read_b128 {vr(vP)}, v{vT1} offset:{L_MX}
    """)
    vTr, vTr2 = vD + 14, vD + 15
    g(f"""
    v_lshrrev_b32 v{vP+4}, 4, v{vL}
    v_bfe_u32 v{vTr}, v{vL}, 2, 2
    v_lshl_add_u32 v{vTr}, v{vP+4}, 3, v{vTr}
    v_mul_u32_u24 v{vTr}, 896, v{vTr}
    v_and_b32 v{vP+6}, 3, v{vL}
    v_lshl_add_u32 v{vTr}, v{vP+6}, 3, v{vTr}
    s_mul_i32 s{sT0}, s{sW}, 224
    v_add_u32 v{vTr}, s{sT0}, v{vTr}
    v_lshlrev_b32 v{vP+4}, 4, v{vP+4}
    ds_read_b128 {vr(vA)}, v{vP+4} offset:{L_HB}
    v_add_u32 v{vTr2}, {L_W2}, v{vTr}
    """)
    for c in range(7):
        for hf in range(2):
            g(f"ds_read_b64_tr_b16 {ar(aW2 + 4*c + 2*hf, 2)}, v{vTr2} offset:{hf*3584 + c*32}")
    g("s_waitcnt lgkmcnt(14)")
    g(f"""
    v_max3_f32 v{vM}, v{vP}, v{vP+1}, v{vP+2}
    v_max_f32 v{vM}, v{vM}, v{vP+3}
    v_mul_f32 v{vM}, s{sC}, v{vM}
    """)
    for i in range(0, 32, 4):
        for j in range(4):
            g(f"v_fma_f32 v{vS+i+j}, v{vS+i+j}, s{sC}, -v{vM}")
        for j in range(4):
            g(f"v_exp_f32 v{vS+i+j}, v{vS+i+j}")
        for j in range(4):
            g(f"v_cvt_pk_bf16_f32 v{vS+i+j}, v{vS+i+j}, v{vS+i+j}")
    g("s_waitcnt lgkmcnt(0)")
    for t in range(2):
        for c in range(7):
            for hf in range(2):
                g(f"ds_read_b64_tr_b16 {ar(aWO + (t*7+c)*4 + 2*hf, 2)}, v{vTr} offset:{L_WO + t*28672 + hf*3584 + c*32}")
    for c in range(7):
        g(f"v_mfma_f32_16x16x32_bf16 {vr(vP+4*c)}, {vr(vA)}, {ar(aW2+4*c)}, 0")
    g(f"""
    s_mov_b32 s86, 0xffff0000
    s_mov_b32 s87, 0xffff0000
    s_mov_b32 s88, 0
    s_mov_b32 s89, -1
    v_mov_b32 v{vD+1}, s{sTag}
    v_mov_b32 v{vD+3}, s{sTag}
    v_mov_b32 v{vD+5}, s{sTag}
    v_mov_b32 v{vD+7}, s{sTag}
    """)
    g(f"""
    v_cndmask_b32 v{vT0}, v{vP}, v{vP+4}, s[86:87]
    v_cndmask_b32 v{vT1}, v{vP+8}, v{vP+12}, s[86:87]
    v_cndmask_b32 v{vD+2}, v{vT0}, v{vT1}, s[88:89]
    v_cndmask_b32 v{vT0}, v{vP+16}, v{vP+20}, s[86:87]
    v_cndmask_b32 v{vD+6}, v{vT0}, v{vP+24}, s[88:89]
    """)
    stamp("mid_done")

    def prep_p(i):
        for r in range(4):
            g(f"v_and_b32 v{vA + 4*(i&1) + r}, v{vS+i}, v{vPM+r}")

    prep_p(0)
    for i in range(32):
        a = vr(vA + 4 * (i & 1))
        if i < 31:
            prep_p(i + 1)
        c = "0" if i == 0 else vr(vLacc)
        g(f"v_mfma_f32_16x16x32_bf16 {vr(vLacc)}, {a}, {vr(vOnes)}, {c}")
        g.wait_vm(("kv", 64 + 2 * i + 1))
        for t, accr in ((0, vAcc0), (1, vAcc1)):
            kk = 2 * i + t
            src = vr(128 + 4 * kk) if kk < 32 else ar(4 * (kk - 32))
            c = "0" if i == 0 else vr(accr)
            g(f"v_mfma_f32_16x16x32_bf16 {vr(accr)}, {a}, {src}, {c}")
        kv_load()
        kv_load()
    assert kl[0] == 128
    stamp("pv_done")

    vAc, vLp, vRd, vOad, vY0, vY1 = vD + 8, vD + 9, vD + 10, vD + 11, vD + 12, vD + 13
    g(f"""
    v_lshrrev_b32 v{vT0}, 4, v{vL}
    v_and_b32 v{vT1}, 1, v{vT0}
    s_lshl_b32 s{sT0}, s{sW}, 11
    v_lshlrev_b32 v{vAc}, 10, v{vT1}
    v_add_u32 v{vAc}, s{sT0}, v{vAc}
    v_lshrrev_b32 v{vT0}, 1, v{vT0}
    v_lshl_add_u32 v{vAc}, v{vT0}, 4, v{vAc}
    v_and_b32 v{vT0}, 15, v{vL}
    v_lshl_add_u32 v{vAc}, v{vT0}, 5, v{vAc}
    s_lshl_b32 s{sT0}, s{sW}, 2
    v_lshlrev_b32 v{vLp}, 4, v{vT1}
    v_add_u32 v{vLp}, s{sT0}, v{vLp}
    v_lshlrev_b32 v{vRd}, 3, v{vTid}
    v_lshrrev_b32 v{vT0}, 5, v{vTid}
    v_lshlrev_b32 v{vOad}, 12, v{vT0}
    v_and_b32 v{vT0}, 31, v{vTid}
    v_lshl_add_u32 v{vOad}, v{vT0}, 4, v{vOad}
    """)
    g(f"""
    ds_write_b128 v{vAc}, {vr(vAcc0)} offset:{L_AC}
    ds_write_b128 v{vAc}, {vr(vAcc1)} offset:{L_AC+512}
    s_mov_b32 exec_lo, 0x00010001
    s_mov_b32 exec_hi, 0
    ds_write_b32 v{vLp}, v{vLacc} offset:{L_LP}
    s_mov_b64 exec, -1
    s_waitcnt lgkmcnt(0)
    s_barrier
    """)
    for w in range(4):
        g(f"ds_read_b64 v[{vP+2*w}:{vP+2*w+1}], v{vRd} offset:{L_AC + 2048*w}")
    g(f"""
    s_lshl_b32 s{sT0}, s{sGrp}, 15
    s_lshl_b32 s{sT1}, s{sS}, 9
    s_add_u32 s{sT0}, s{sT0}, s{sT1}
    s_add_u32 s{sT0}, s{sT0}, {WS_O}
    v_mov_b32 v{vP+9}, s{sTag}
    v_mov_b32 v{vP+11}, s{sTag}
    s_waitcnt lgkmcnt(0)
    v_add_f32 v{vP}, v{vP}, v{vP+2}
    v_add_f32 v{vP+1}, v{vP+1}, v{vP+3}
    v_add_f32 v{vP+4}, v{vP+4}, v{vP+6}
    v_add_f32 v{vP+5}, v{vP+5}, v{vP+7}
    v_add_f32 v{vP+8}, v{vP}, v{vP+4}
    v_add_f32 v{vP+10}, v{vP+1}, v{vP+5}
    """)
    g.vmem(f"buffer_store_dwordx4 {vr(vP+8)}, v{vOad}, {srd(sWS)}, s{sT0} offen sc1", "ostore")
    stamp("o_published")
    g(f"s_cmp_lg_u32 s{sW}, 0\ns_cbranch_scc1 L_hop1_done")
    g(f"""
    v_bfe_u32 v{vT0}, v{vL}, 2, 1
    v_lshlrev_b32 v{vT0}, 4, v{vT0}
    s_mov_b64 exec, 0x11
    ds_read_b128 {vr(vP+12)}, v{vT0} offset:{L_LP}
    s_lshl_b32 s{sT1}, s{sGrp}, 10
    s_lshl_b32 s{sT2}, s{sS}, 7
    s_add_u32 s{sT2}, s{sT2}, s{sT1}
    s_add_u32 s{sT2}, s{sT2}, {WS_ML}
    v_mov_b32 v{vP+16}, v{vM}
    v_mov_b32 v{vP+17}, s{sTag}
    v_mov_b32 v{vP+19}, s{sTag}
    s_waitcnt lgkmcnt(0)
    v_add_f32 v{vP+12}, v{vP+12}, v{vP+13}
    v_add_f32 v{vP+14}, v{vP+14}, v{vP+15}
    v_add_f32 v{vP+18}, v{vP+12}, v{vP+14}
    """)
    g.vmem(f"buffer_store_dwordx4 {vr(vP+16)}, v{vT0}, {srd(sWS)}, s{sT2} offen sc1", counted=False)
    g("s_mov_b64 exec, -1")
    g(f"""
    s_lshl_b32 s{sT0}, s{sGrp}, 15
    s_lshl_b32 s{sT2}, s{sS}, 12
    s_add_u32 s{sT0}, s{sT0}, s{sT2}
    s_add_u32 s{sT0}, s{sT0}, {WS_O}
    s_lshr_b32 s{sT2}, s{sS}, 2
    s_lshl_b32 s{sT2}, s{sT2}, 4
    s_add_u32 s{sT1}, s{sT1}, s{sT2}
    s_add_u32 s{sT1}, s{sT1}, {WS_ML}
    v_lshrrev_b32 v{vT0}, 5, v{vL}
    v_lshlrev_b32 v{vT0}, 7, v{vT0}
    s_mov_b32 s{sCnt}, {cfg.spin}
    """)
    g.label("L_h1_loop")
    for i in range(4):
        g.vmem(f"buffer_load_dwordx4 {vr(vP+4*i)}, v{vL16}, {srd(sWS)}, s{sT0} offen offset:{1024*i} sc1", counted=False)
    for i in range(4):
        g.vmem(f"buffer_load_dwordx4 {vr(vP+16+4*i)}, v{vT0}, {srd(sWS)}, s{sT1} offen offset:{256*i} sc1", counted=False)
    g("s_waitcnt vmcnt(0)")
    for i in range(8):
        g(f"v_cmpx_eq_u32 vcc, s{sTag}, v{vP+4*i+1}\nv_cmpx_eq_u32 vcc, s{sTag}, v{vP+4*i+3}")
    g("s_cmp_eq_u64 exec, -1")
    g("s_mov_b64 exec, -1")
    g("s_cbranch_scc1 L_h1_ok")
    g(f"s_sub_u32 s{sCnt}, s{sCnt}, 1\ns_cbranch_scc1 L_h1_ok")
    if cfg.sleep1:
        g(f"s_sleep {cfg.sleep1}")
    g("s_branch L_h1_loop")
    g.label("L_h1_ok")
    stamp("hop1_seen")
    m = [vP + 16 + 4 * i for i in range(4)]
    l_ = [x + 2 for x in m]
    d0 = [vP + 4 * i for i in range(4)]
    d1 = [x + 2 for x in d0]
    MX, TT = vT0, vT1
    g(f"""
    v_max3_f32 v{MX}, v{m[0]}, v{m[1]}, v{m[2]}
    v_max_f32 v{MX}, v{MX}, v{m[3]}
    v_mov_b32 v{TT}, v{MX}
    v_permlane32_swap_b32 v{MX}, v{TT}
    v_max_f32 v{MX}, v{MX}, v{TT}
    """)
    for i in range(4):
        g(f"v_sub_f32 v{m[i]}, v{m[i]}, v{MX}")
    for i in range(4):
        g(f"v_exp_f32 v{m[i]}, v{m[i]}")
    g(f"v_mul_f32 v{l_[0]}, v{m[0]}, v{l_[0]}\nv_mul_f32 v{d0[0]}, v{m[0]}, v{d0[0]}\nv_mul_f32 v{d1[0]}, v{m[0]}, v{d1[0]}")
    for i in range(1, 4):
        g(f"v_fmac_f32 v{l_[0]}, v{m[i]}, v{l_[i]}\nv_fmac_f32 v{d0[0]}, v{m[i]}, v{d0[i]}\nv_fmac_f32 v{d1[0]}, v{m[i]}, v{d1[i]}")
    g(f"""
    v_mov_b32 v{l_[1]}, v{l_[0]}
    v_mov_b32 v{d0[1]}, v{d0[0]}
    v_mov_b32 v{d1[1]}, v{d1[0]}
    v_permlane32_swap_b32 v{l_[0]}, v{l_[1]}
    v_permlane32_swap_b32 v{d0[0]}, v{d0[1]}
    v_permlane32_swap_b32 v{d1[0]}, v{d1[1]}
    v_add_f32 v{l_[0]}, v{l_[0]}, v{l_[1]}
    v_add_f32 v{d0[0]}, v{d0[0]}, v{d0[1]}
    v_add_f32 v{d1[0]}, v{d1[0]}, v{d1[1]}
    v_rcp_f32 v{l_[0]}, v{l_[0]}
    v_and_b32 v{TT}, 31, v{vL}
    v_lshlrev_b32 v{TT}, 2, v{TT}
    v_mul_f32 v{d0[0]}, v{d0[0]}, v{l_[0]}
    v_mul_f32 v{d1[0]}, v{d1[0]}, v{l_[0]}
    v_cvt_pk_bf16_f32 v{d0[0]}, v{d0[0]}, v{d1[0]}
    ds_write_b32 v{TT}, v{d0[0]} offset:{L_OB}
    """)
    g.label("L_hop1_done")
    g(f"""
    v_lshrrev_b32 v{vY0}, 3, v{vL}
    s_mul_i32 s{sT0}, s{sW}, 14
    v_add_u32 v{vY0}, s{sT0}, v{vY0}
    v_lshlrev_b32 v{vY0}, 13, v{vY0}
    v_and_b32 v{vY1}, 7, v{vL}
    v_lshl_add_u32 v{vY0}, v{vY1}, 4, v{vY0}
    v_add_u32 v{vY1}, 65536, v{vY0}
    v_lshrrev_b32 v{vT0}, 4, v{vL}
    v_lshlrev_b32 v{vT0}, 4, v{vT0}
    s_mul_i32 s{sT0}, s{sB}, {56*8192}
    s_lshl_b32 s{sT1}, s{sP}, 7
    s_add_u32 s{sT0}, s{sT0}, s{sT1}
    s_add_u32 s{sT0}, s{sT0}, {WS_Y}
    s_waitcnt lgkmcnt(0)
    s_barrier
    ds_read_b128 {vr(vA)}, v{vT0} offset:{L_OB}
    ds_read_b128 {vr(vA+4)}, v{vT0} offset:{L_OB+64}
    s_waitcnt lgkmcnt(1)
    """)
    for c in range(7):
        g(f"v_mfma_f32_16x16x32_bf16 {vr(vS+4*c)}, {vr(vA)}, {ar(aWO+4*c)}, 0")
    g("s_waitcnt lgkmcnt(0)")
    for c in range(7):
        g(f"v_mfma_f32_16x16x32_bf16 {vr(vS+4*c)}, {vr(vA+4)}, {ar(aWO+28+4*c)}, {vr(vS+4*c)}")
    g(f"""
    v_cndmask_b32 v{vT0}, v{vS}, v{vS+4}, s[86:87]
    v_cndmask_b32 v{vT1}, v{vS+8}, v{vS+12}, s[86:87]
    v_cndmask_b32 v{vD}, v{vT0}, v{vT1}, s[88:89]
    """)
    g.vmem(f"buffer_store_dwordx4 {vr(vD)}, v{vY0}, {srd(sWS)}, s{sT0} offen sc1", "ystore")
    g(f"""
    v_cndmask_b32 v{vT0}, v{vS+16}, v{vS+20}, s[86:87]
    v_cndmask_b32 v{vD+4}, v{vT0}, v{vS+24}, s[88:89]
    s_mov_b32 exec_lo, -1
    s_mov_b32 exec_hi, 0xffff
    """)
    g.vmem(f"buffer_store_dwordx4 {vr(vD+4)}, v{vY1}, {srd(sWS)}, s{sT0} offen sc1", "ystore")
    g("s_mov_b64 exec, -1")
    stamp("y_published")
    g(f"s_cmp_lg_u32 s{sW}, 0\ns_cbranch_scc1 L_finish")
    g(f"s_cmp_ge_u32 s{sP}, 56\ns_cbranch_scc1 L_finish")
    g(f"""
    s_mul_i32 s{sT0}, s{sB}, {56*8192}
    s_lshl_b32 s{sT1}, s{sP}, 13
    s_add_u32 s{sT0}, s{sT0}, s{sT1}
    s_add_u32 s{sT0}, s{sT0}, {WS_Y}
    s_add_u32 s{sT1}, s{sT0}, 4096
    s_mov_b32 s{sCnt}, {cfg.spin}
    """)
    g.label("L_h2_loop")
    for i in range(8):
        so = sT0 if i < 4 else sT1
        g.vmem(f"buffer_load_dwordx4 {vr(vP+4*i)}, v{vL16}, {srd(sWS)}, s{so} offen offset:{1024*(i%4)} sc1", counted=False)
    g("s_waitcnt vmcnt(0)")
    for i in range(8):
        g(f"v_cmpx_eq_u32 vcc, s{sTag}, v{vP+4*i+1}\nv_cmpx_eq_u32 vcc, s{sTag}, v{vP+4*i+3}")
    g("s_cmp_eq_u64 exec, -1")
    g("s_mov_b64 exec, -1")
    g("s_cbranch_scc1 L_h2_ok")
    g(f"s_sub_u32 s{sCnt}, s{sCnt}, 1\ns_cbranch_scc1 L_h2_ok")
    if cfg.sleep2:
        g(f"s_sleep {cfg.sleep2}")
    g("s_branch L_h2_loop")
    g.label("L_h2_ok")
    stamp("hop2_seen")
    for off in (0, 2):
        for k in (1, 3, 5, 7):
            g(f"v_add_f32 v{vP+4*(k-1)+off}, v{vP+4*(k-1)+off}, v{vP+4*k+off}")
    for off in (0, 2):
        for k in (2, 6):
            g(f"v_add_f32 v{vP+4*(k-2)+off}, v{vP+4*(k-2)+off}, v{vP+4*k+off}")
    g(f"v_add_f32 v{vP}, v{vP}, v{vP+16}\nv_add_f32 v{vP+2}, v{vP+2}, v{vP+18}")
    g(f"""
    v_add_f32_dpp v{vP}, v{vP}, v{vP} row_ror:8 row_mask:0xf bank_mask:0xf
    v_add_f32_dpp v{vP+2}, v{vP+2}, v{vP+2} row_ror:8 row_mask:0xf bank_mask:0xf
    v_mov_b32 v{vP+1}, v{vP}
    v_mov_b32 v{vP+3}, v{vP+2}
    v_permlane16_swap_b32 v{vP}, v{vP+1}
    v_permlane16_swap_b32 v{vP+2}, v{vP+3}
    v_add_f32 v{vP}, v{vP}, v{vP+1}
    v_add_f32 v{vP+2}, v{vP+2}, v{vP+3}
    v_mov_b32 v{vP+1}, v{vP}
    v_mov_b32 v{vP+3}, v{vP+2}
    v_permlane32_swap_b32 v{vP}, v{vP+1}
    v_permlane32_swap_b32 v{vP+2}, v{vP+3}
    v_add_f32 v{vP}, v{vP}, v{vP+1}
    v_add_f32 v{vP+2}, v{vP+2}, v{vP+3}
    v_cvt_pk_bf16_f32 v{vP}, v{vP}, v{vP+2}
    v_and_b32 v{vP+1}, 0xffff0000, v{vP}
    v_lshlrev_b32 v{vP}, 16, v{vP}
    v_mul_f32 v{vP}, s{sG_}, v{vP}
    v_mul_f32 v{vP+1}, s{sOMG}, v{vP+1}
    v_cvt_pk_bf16_f32 v{vP}, v{vP}, v{vP+1}
    v_and_b32 v{vP+1}, 0xffff0000, v{vP}
    v_lshlrev_b32 v{vP}, 16, v{vP}
    v_add_f32 v{vP}, v{vP}, v{vP+1}
    v_cvt_pk_bf16_f32 v{vP}, v{vP}, v{vP}
    s_mul_i32 s{sT0}, s{sB}, 896
    s_lshl_b32 s{sT1}, s{sP}, 4
    s_add_u32 s{sT0}, s{sT0}, s{sT1}
    v_lshlrev_b32 v{vT0}, 1, v{vL}
    s_mov_b64 exec, 0xff
    """)
    g.vmem(f"buffer_store_short v{vP}, v{vT0}, {srd(sOUT)}, s{sT0} offen", counted=False)
    g(f"s_cmp_lg_u32 s{sP}, 0\ns_cbranch_scc1 L_finish")
    g(f"""
    s_mov_b64 exec, 1
    s_lshl_b32 s{sT0}, s{sB}, 8
    v_mov_b32 v{vP+4}, s{sTag}
    v_mov_b32 v{vP+5}, 0
    """)
    g.vmem(f"buffer_store_dword v{vP+4}, v{vP+5}, {srd(sWS)}, s{sT0} offen sc1", counted=False)
    g.label("L_finish")
    if dbg:
        g("s_mov_b64 exec, -1")
        stamp("end")
        g(f"""
        s_lshl_b32 s{sT0}, s2, 2
        s_add_u32 s{sT0}, s{sT0}, s{sW}
        s_lshl_b32 s{sT0}, s{sT0}, 8
        s_add_u32 s{sT0}, s{sT0}, {WS_DBG}
        v_lshlrev_b32 v{vT0}, 2, v{vL}
        buffer_store_dword v{vStamp}, v{vT0}, {srd(sWS)}, s{sT0} offen
        s_cmp_lg_u32 s{sW}, 0
        s_cbranch_scc1 L_exit
        s_memrealtime s[98:99]
        s_waitcnt lgkmcnt(0)
        v_mov_b32 v{vP}, s100
        v_mov_b32 v{vP+1}, s101
        v_mov_b32 v{vP+2}, s98
        v_mov_b32 v{vP+3}, s99
        s_lshl_b32 s{sT0}, s2, 4
        s_add_u32 s{sT0}, s{sT0}, {WS_T}
        v_mov_b32 v{vT0}, 0
        s_mov_b64 exec, 1
        buffer_store_dwordx4 {vr(vP)}, v{vT0}, {srd(sWS)}, s{sT0} offen
        """)
    g.label("L_exit")
    g("s_endpgm")
    body = g.finalize()

    ref = open("cdna_kernels/" + NAME + ".s.ref").read().split("\n")
    head = [l for l in ref if l.startswith(";") and "@launch" not in l and "Override" not in l and "grid=ceil" not in l]
    head = head[:head.index(next(l for l in head if "d_ws" in l)) + 1]
    txt = "\n".join(head) + "\n"
    txt += f"; @launch grid=(256,1,1) block=(256,1,1) lds={LDS_BYTES}\n"
    txt += '.amdgcn_target "amdgcn-amd-amdhsa--gfx950"\n.text\n'
    txt += f".globl {NAME}_kernel\n.p2align 8\n.type {NAME}_kernel,@function\n{NAME}_kernel:\n"
    txt += body
    txt += f""".section .rodata,"a"
.p2align 6
.amdhsa_kernel {NAME}_kernel
  .amdhsa_next_free_vgpr 512
  .amdhsa_next_free_sgpr 102
  .amdhsa_accum_offset 256
  .amdhsa_group_segment_fixed_size 0
  .amdhsa_kernarg_size 96
  .amdhsa_user_sgpr_count 2
  .amdhsa_user_sgpr_kernarg_segment_ptr 1
  .amdhsa_system_sgpr_workgroup_id_x 1
.end_amdhsa_kernel
"""
    return txt, stamp_names, g.nops


def parse(argv=None):
    ap = argparse.ArgumentParser()
    ap.add_argument("-o", default="cdna_kernels/" + NAME + ".s")
    ap.add_argument("--debug", action="store_true")
    ap.add_argument("--kvflags", default="nt")
    ap.add_argument("--wflags", default="")
    ap.add_argument("--ilvA", type=int, default=1)
    ap.add_argument("--ilvB", type=int, default=1)
    ap.add_argument("--P", type=int, default=48)
    ap.add_argument("--pollpos", type=int, default=14)
    ap.add_argument("--spin", type=int, default=20000)
    ap.add_argument("--sleep1", type=int, default=1)
    ap.add_argument("--sleep2", type=int, default=1)
    cfg = ap.parse_args(argv)
    cfg.ilvA = [cfg.ilvA] * 14
    cfg.ilvB = [cfg.ilvB] * 40
    return cfg


if __name__ == "__main__":
    cfg = parse()
    txt, names, nops = build(cfg)
    open(cfg.o, "w").write(txt)
    print("wrote", cfg.o, "nops inserted:", nops, "stamps:", names)
```

```python
import argparse, sys
from asmlib import Gen

NAME = "gated_mix__gqa_block_cached__dense_activation_relu__decode"

WS_EP = 0x0
WS_Q = 0x1000
WS_ML = 0x20000
WS_O = 0x40000
WS_Y = 0x200000
WS_SLOW = 0x400000
WS_DBG = 0x800000
WS_T = 0xFF00000

L_QP = 0
L_HP = L_QP + 2048
L_QB = L_HP + 1024
L_HB = L_QB + 1024
L_MX = L_HB + 128
L_LP = L_MX + 128
L_OB = L_LP + 128
L_ST = L_OB + 128
L_AC = L_ST + 128
L_WO = L_AC + 8192
L_W2 = L_WO + 57344
LDS_BYTES = L_W2 + 28672 + 128

sX, sWQ, sW1, sK, sV, sWO, sW2, sG, sWS, sOUT = 28, 32, 36, 40, 44, 48, 52, 56, 60, 64
sHKV, sS, sB, sW, sTag, sP, sGrp = 68, 69, 70, 71, 72, 73, 74
sT0, sT1, sT2, sT3, sT4 = 75, 76, 77, 78, 79
sKoff, sVoff, sC, sSelLo, sSelHi, sCnt = 80, 81, 82, 83, 84, 85
sG_, sOMG = 94, 95
sDmaG, sDmaL = 96, 97


def srd(b):
    return f"s[{b}:{b+3}]"


def vr(b, n=4):
    return f"v[{b}:{b+n-1}]"


def ar(b, n=4):
    return f"a[{b}:{b+n-1}]"


vTid, vL, vKoff, vVoff = 0, 1, 2, 3
vPM = 4
vQ = 8
vAcc0, vAcc1, vLacc, vOnes = 16, 20, 24, 28
vS = 32
vD = 64
vA = 80
vWq, vW1, vX, vL16, vM, vT0, vT1, vStamp = 88, 89, 90, 91, 92, 93, 94, 95
vP = 96
vWQd, vW1d, vXd, vMQ, vMH, vXdup, vAq, vAh, vDq, vDh, vGx, vGw = 128, 184, 212, 220, 224, 226, 228, 236, 240, 244, 248, 252
aWO, aW2 = 128, 208
NT = 10


def build(cfg):
    g = Gen()
    g.virtual = set()
    dbg = cfg.debug
    wf = cfg.wflags
    nstamp = [0]
    stamp_names = []

    hd = cfg.hdebug
    hd_sel = cfg.hdebug_sel.split(",") if cfg.hdebug_sel else []

    probe = cfg.probe.split(":") if cfg.probe else None

    def stamp(name):
        if probe and name == probe[0]:
            g(f"s_memrealtime s[98:99]\ns_waitcnt lgkmcnt(0)\ns_sub_u32 s98, s98, s100\ns_cmp_gt_u32 s98, {probe[1]}\ns_cselect_b32 s101, 1, 0")
        if hd and name in hd_sel:
            k = 2 + hd_sel.index(name)
            g(f"s_memrealtime s[98:99]\ns_waitcnt lgkmcnt(0)\nv_writelane_b32 v{vStamp}, s98, {k}")
        if not dbg:
            return
        g(f"s_memrealtime s[98:99]\ns_waitcnt lgkmcnt(0)\nv_writelane_b32 v{vStamp}, s98, {nstamp[0]}")
        stamp_names.append(name)
        nstamp[0] += 1

    def vstamp(name, sreg):
        if not dbg:
            return
        g(f"v_writelane_b32 v{vStamp}, s{sreg}, {nstamp[0]}")
        stamp_names.append(name)
        nstamp[0] += 1

    def poll_masked(name, base, loads, sleep, bound=None, timeout=None, toggle=()):
        n = len(loads)
        pend = [28 + 2 * i for i in range(n)]
        tv = [vS + 24 + i for i in range(n)]
        for i, (va, so, imm) in enumerate(loads):
            g.vmem(f"buffer_load_dwordx4 {vr(base+4*i)}, v{va}, {srd(sWS)}, s{so} offen offset:{imm} sc1", counted=False)
        g(f"s_mov_b32 s{sCnt}, {bound or cfg.spin}")
        if dbg:
            g(f"s_mov_b32 s59, {32 if name.startswith('h1') else 46}")
        g.label(f"L_{name}_loop")
        g("s_waitcnt vmcnt(0)")
        if dbg:
            g(f"s_memrealtime s[98:99]\ns_waitcnt lgkmcnt(0)\ns_mov_b32 m0, s59\ns_nop 3\nv_writelane_b32 v{vStamp}, s98, m0\ns_add_u32 s59, s59, 1\ns_min_u32 s59, s59, {45 if name.startswith('h1') else 60}")
        for i in range(n):
            g(f"v_bitop3_b32 v{tv[i]}, v{base+4*i+1}, v{base+4*i+3}, s{sTag} bitop3:0x7e")
        g(f"v_or3_b32 v{vT0}, v{tv[0]}, v{tv[1]}, v{tv[2]}")
        k = 3
        while k < n:
            if k + 1 < n:
                g(f"v_or3_b32 v{vT0}, v{vT0}, v{tv[k]}, v{tv[k+1]}")
                k += 2
            else:
                g(f"v_or_b32 v{vT0}, v{vT0}, v{tv[k]}")
                k += 1
        g(f"v_cmp_ne_u32 vcc, 0, v{vT0}")
        g("s_cmp_eq_u64 vcc, 0")
        g(f"s_cbranch_scc1 L_{name}_done")
        if name[1] in cfg.ablate:
            g(f"s_branch L_{name}_done")
        for i in range(n):
            g(f"v_cmp_ne_u32 s[{pend[i]}:{pend[i]+1}], 0, v{tv[i]}")
        g(f"s_sub_u32 s{sCnt}, s{sCnt}, 1")
        g(f"s_cbranch_scc1 {timeout or ('L_' + name + '_done')}")
        if sleep:
            g(f"s_sleep {sleep}")
        for r in toggle:
            g(f"s_xor_b32 s{r}, s{r}, {WS_SLOW}")
        for i, (va, so, imm) in enumerate(loads):
            g(f"s_mov_b64 exec, s[{pend[i]}:{pend[i]+1}]")
            g(f"s_cbranch_execz L_{name}_skip{i}")
            g.vmem(f"buffer_load_dwordx4 {vr(base+4*i)}, v{va}, {srd(sWS)}, s{so} offen offset:{imm} sc1", counted=False)
            g.label(f"L_{name}_skip{i}")
        g("s_mov_b64 exec, -1")
        g(f"s_branch L_{name}_loop")
        g.label(f"L_{name}_done")

    g("s_cmp_ge_u32 s2, 256")
    g("s_cbranch_scc1 L_exit")
    g("s_load_dwordx16 s[4:19], s[0:1], 0")
    g("s_load_dwordx8 s[20:27], s[0:1], 64")
    if dbg or cfg.hdebug or cfg.probe or cfg.lite:
        g(f"v_mov_b32 v{vStamp}, 0")
        g("s_memrealtime s[100:101]")
        if cfg.probe == "slow:0":
            g("s_waitcnt lgkmcnt(0)\ns_mov_b32 s101, 0")
    g(f"""
    v_lshrrev_b32 v{vT0}, 6, v{vTid}
    v_and_b32 v{vL}, 63, v{vTid}
    s_and_b32 s{sHKV}, s2, 7
    v_readfirstlane_b32 s{sW}, v{vT0}
    s_lshr_b32 s{sT0}, s2, 3
    v_bfe_u32 v{vP+2}, v{vL}, 2, 2
    s_and_b32 s{sS}, s{sT0}, 7
    v_lshrrev_b32 v{vP+3}, 4, v{vL}
    s_lshr_b32 s{sB}, s{sT0}, 3
    {"s_xor_b32 s%d, s%d, 3" % (sB, sB) if cfg.flipb else ""}
    v_and_b32 v{vP+4}, 3, v{vL}
    s_lshl_b32 s{sGrp}, s{sB}, 3
    v_lshlrev_b32 v{vKoff}, 9, v{vP+2}
    s_add_u32 s{sGrp}, s{sGrp}, s{sHKV}
    v_lshl_add_u32 v{vKoff}, v{vP+3}, 6, v{vKoff}
    s_lshl_b32 s{sT2}, s{sW}, 11
    v_lshl_add_u32 v{vKoff}, v{vP+4}, 4, v{vKoff}
    s_lshl_b32 s{sT3}, s{sGrp}, 21
    v_add_u32 v{vKoff}, s{sT2}, v{vKoff}
    s_lshl_b32 s{sT1}, s{sS}, 18
    s_add_u32 s{sT3}, s{sT3}, s{sT1}
    """)

    def late_prologue():
        g(f"""
        s_lshl_b32 s{sP}, s{sHKV}, 3
        s_add_u32 s{sP}, s{sP}, s{sS}
        v_lshrrev_b32 v{vT1}, 3, v{vL}
        v_and_b32 v{vP}, 7, v{vL}
        v_lshlrev_b32 v{vL16}, 4, v{vL}
        """)
        g(f"""
        v_mul_u32_u24 v{vP+1}, 14, v{vT1}
        s_mul_i32 s{sT1}, s{sW}, 112
        v_add_u32 v{vP+1}, s{sT1}, v{vP+1}
        v_lshlrev_b32 v{vX}, 1, v{vP+1}
        v_lshlrev_b32 v{vWq}, 13, v{vP+1}
        v_lshl_add_u32 v{vWq}, v{vP}, 4, v{vWq}
        v_mul_u32_u24 v{vW1}, 3584, v{vP+1}
        v_lshl_add_u32 v{vW1}, v{vP}, 3, v{vW1}
        v_and_b32 v{vP+5}, 15, v{vL}
        s_lshl_b32 s{sT2}, s{sW}, 11
        v_lshlrev_b32 v{vVoff}, 9, v{vP+3}
        v_lshl_add_u32 v{vVoff}, v{vP+5}, 4, v{vVoff}
        v_add_u32 v{vVoff}, s{sT2}, v{vVoff}
        """)
    g("s_waitcnt lgkmcnt(0)")
    if dbg:
        g(f"v_writelane_b32 v{vStamp}, s100, 63")

    def mk(dst, ptr, off_sgpr, size):
        if off_sgpr is None:
            g(f"s_mov_b32 s{dst}, s{ptr}\ns_mov_b32 s{dst+1}, s{ptr+1}")
        else:
            g(f"s_add_u32 s{dst}, s{ptr}, s{off_sgpr}\ns_addc_u32 s{dst+1}, s{ptr+1}, 0")
        if size is not None:
            g(f"s_mov_b32 s{dst+2}, {size}")
        g(f"s_mov_b32 s{dst+3}, 0x20000")

    mk(sK, 6, sT3, 262144)
    late_desc = []
    def desc_x():
        g(f"s_mul_i32 s{sT1}, s{sB}, 896")
        mk(sX, 4, sT1, 896)
    def desc_wq():
        g(f"s_lshl_b32 s{sT1}, s{sP}, 7")
        mk(sWQ, 10, sT1, None)
        g(f"s_sub_u32 s{sWQ+2}, 3670016, s{sT1}")
    def desc_v():
        g(f"s_lshl_b32 s{sT1}, s{sGrp}, 21\ns_lshl_b32 s{sT2}, s{sS}, 18\ns_add_u32 s{sT1}, s{sT1}, s{sT2}")
        mk(sV, 8, sT1, 262144)
    def desc_w1():
        g.comment("seven of the eight splits of a head take a slice of hidden units; the one without is the split whose")
        if cfg.swapbad:
            g(f"s_lshr_b32 s{sT0}, s10, 7\ns_add_u32 s{sT0}, s{sT0}, s{sS}\ns_sub_u32 s{sT0}, s{sT0}, 4\ns_and_b32 s{sT2}, s{sT0}, 7")
        else:
            g(f"s_mov_b32 s{sT2}, s{sS}")
        g(f"s_mul_i32 s{sT0}, s{sHKV}, 7\ns_add_u32 s{sT0}, s{sT0}, s{sT2}")
        g(f"s_lshl_b32 s{sT1}, s{sT0}, 6")
        mk(sW1, 16, sT1, None)
        g(f"s_sub_u32 s{sW1+2}, 1605632, s{sT1}")
        g(f"s_mul_i32 s{sT1}, s{sT0}, 28672")
        mk(sW2, 18, sT1, 28672)
        g(f"s_cmp_eq_u32 s{sT2}, 7\ns_cselect_b32 s{sW1+2}, 0, s{sW1+2}\ns_cselect_b32 s{sW2+2}, 0, s{sW2+2}")
        mk(sG, 20, None, 896)
    def desc_wo():
        g(f"s_mul_i32 s{sT1}, s{sP}, 57344")
        mk(sWO, 12, sT1, 57344)

    kl = [0]

    thr = [cfg.thrA]

    def throttle():
        if thr[0] and len(g.vm) >= thr[0]:
            g(f"s_waitcnt vmcnt({thr[0]-1})")

    def kv_load():
        k = kl[0]
        if k >= 128:
            return
        kl[0] += 1
        throttle()
        isv = k >= 64
        kk = k - 64 if isv else k
        i, t = kk >> 1, kk & 1
        so = sVoff if isv else sKoff
        if kk % 2 == 0:
            if kk == 0:
                if cfg.rot:
                    g.comment("every 2 MB page starts its walk at its own phase (head*4 + batch) * 8 KB and wraps in the slice")
                    g(f"s_lshl_b32 s{so}, s{sHKV}, 2\ns_add_u32 s{so}, s{so}, s{sB}\ns_lshl_b32 s{so}, s{so}, 13")
                else:
                    g(f"s_mov_b32 s{so}, 0")
            else:
                g(f"s_add_u32 s{so}, s{so}, 8192")
                if cfg.rot:
                    g(f"s_and_b32 s{so}, s{so}, 0x3ffff")
        imm = t * 256
        if not isv:
            dst, va, sr = ar(4 * kk), vKoff, sK
        else:
            dst = vr(128 + 4 * kk) if kk < 32 else ar(4 * (kk - 32))
            va, sr = vVoff, sV
        fl = cfg.vflags if isv else cfg.kflags
        g.vmem(f"buffer_load_dwordx4 {dst}, v{va}, {srd(sr)}, s{so} offen offset:{imm} {fl}", ("kv", k))

    qi, wi = [0], [0]
    n_after_poll = [None]
    xops = [("dwo", k) for k in range(14)] + [("dw2", k) for k in range(7)]
    xi = [0]
    sWqOff, sW1Off, sDb = 14, 15, 3

    def x_op():
        if xi[0] >= len(xops):
            return
        kind, i = xops[xi[0]]
        xi[0] += 1
        throttle()
        if "D" in cfg.ablate:
            if kind == "dwo" and i == 0:
                desc_wo()
            g.virtual.add("dma")
            return
        if kind == "dwo":
            if i == 0:
                desc_wo()
                g(f"s_mul_i32 s{sDmaG}, s{sW}, 14336")
            if i % 4 == 0:
                g(f"s_add_u32 s{sDb}, s{sDmaG}, {i*1024}\ns_add_u32 m0, s{sDb}, {L_WO}")
            g.vmem(f"buffer_load_dwordx4 v{vL16}, {srd(sWO)}, s{sDb} offen offset:{(i%4)*1024} {wf} lds", "dma")
        else:
            if i == 0:
                g(f"s_mul_i32 s{sDmaL}, s{sW}, 7168")
            if i % 4 == 0:
                g(f"s_add_u32 s{sDb}, s{sDmaL}, {i*1024}\ns_add_u32 m0, s{sDb}, {L_W2}")
            g.vmem(f"buffer_load_dwordx4 v{vL16}, {srd(sW2)}, s{sDb} offen offset:{(i%4)*1024} {wf} lds", "dma")

    def emit_poll():
        g.comment("wave 0 polls the group's q granules, queued behind the loads issued so far")
        g(f"s_cmp_lg_u32 s{sW}, 0\ns_cbranch_scc1 L_nopoll")
        g(f"s_lshl_b32 s{sT4}, s{sGrp}, 11\ns_add_u32 s{sT4}, s{sT4}, {WS_Q}")
        g.vmem(f"buffer_load_dwordx4 {vr(vP)}, v{vL16}, {srd(sWS)}, s{sT4} offen sc1", counted=False)
        g.vmem(f"buffer_load_dwordx4 {vr(vP+4)}, v{vL16}, {srd(sWS)}, s{sT4} offen offset:1024 sc1", counted=False)
        g.label("L_nopoll")
        n_after_poll[0] = len(g.vm)

    def issue(sched):
        for op in sched:
            if op == "K":
                kv_load()
            elif op == "X":
                late_prologue()
                desc_x()
                g.vmem(f"buffer_load_dwordx4 {vr(vXd)}, v{vX}, {srd(sX)}, 0 offen", "x")
                g.vmem(f"buffer_load_dwordx3 v[{vXd+4}:{vXd+6}], v{vX}, {srd(sX)}, 0 offen offset:16", "x")
            elif op == "Q":
                i = qi[0]; qi[0] += 1
                throttle()
                if i == 0:
                    desc_wq()
                    g(f"s_mov_b32 s{sWqOff}, 0")
                    if "L" in cfg.ablate:
                        g(f"s_mul_i32 s{sT1}, s{sP}, 57344\ns_add_u32 s{sWQ}, s10, s{sT1}\ns_addc_u32 s{sWQ+1}, s11, 0\ns_mov_b32 s{sWQ+2}, 57344")
                        g(f"s_mul_i32 s{sT1}, s{sW}, 14336\nv_add_u32 v{vWq}, s{sT1}, v{vL16}")
                else:
                    g(f"s_add_u32 s{sWqOff}, s{sWqOff}, {1024 if 'L' in cfg.ablate else 8192}")
                g.vmem(f"buffer_load_dwordx4 {vr(vWQd+4*i)}, v{vWq}, {srd(sWQ)}, s{sWqOff} offen {cfg.wqflags if cfg.wqflags is not None else wf}", ("wq", i))
            elif op == "W" and "W" in cfg.ablate:
                i = wi[0]; wi[0] += 1
                if i == 0:
                    desc_w1()
                g.virtual.add(("w1", i))
            elif op == "W":
                i = wi[0]; wi[0] += 1
                throttle()
                if i == 0:
                    desc_w1()
                    g(f"s_mov_b32 s{sW1Off}, 0")
                else:
                    g(f"s_add_u32 s{sW1Off}, s{sW1Off}, 3584")
                g.vmem(f"buffer_load_dwordx2 v[{vW1d+2*i}:{vW1d+2*i+1}], v{vW1}, {srd(sW1)}, s{sW1Off} offen {cfg.w1flags if cfg.w1flags is not None else wf}", ("w1", i))
            elif op == "G":
                g.vmem(f"buffer_load_dwordx4 {vr(vGx)}, v{vL16}, {srd(sX)}, 0 offen", "gate")
                g.vmem(f"buffer_load_dwordx4 {vr(vGw)}, v{vL16}, {srd(sG)}, 0 offen", "gate")
            elif op == "D":
                x_op()
            elif op in "TU":
                g.comment("read the tail's inbox lines once, so that they are cache-resident when they get written")
                if op == "T":
                    g(f"""
                    s_lshl_b32 s{sT0}, s{sGrp}, 15
                    s_lshl_b32 s{sT1}, s{sS}, 12
                    s_add_u32 s{sT0}, s{sT0}, s{sT1}
                    s_lshl_b32 s{sT1}, s{sW}, 10
                    s_add_u32 s{sT0}, s{sT0}, s{sT1}
                    s_add_u32 s{sT0}, s{sT0}, {WS_O}
                    """)
                    throttle()
                    g.vmem(f"buffer_load_dwordx4 {vr(vA)}, v{vL16}, {srd(sWS)}, s{sT0} offen {cfg.preflags}", "pre")
                    g(f"""
                    s_lshl_b32 s{sT0}, s{sGrp}, 10
                    s_lshl_b32 s{sT1}, s{sW}, 8
                    s_add_u32 s{sT0}, s{sT0}, s{sT1}
                    s_add_u32 s{sT0}, s{sT0}, {WS_ML}
                    v_lshrrev_b32 v{vT1}, 5, v{vL}
                    v_lshlrev_b32 v{vT1}, 7, v{vT1}
                    """)
                    throttle()
                    g.vmem(f"buffer_load_dword v{vA+4}, v{vT1}, {srd(sWS)}, s{sT0} offen {cfg.preflags}", "pre")
                g(f"""
                s_mul_i32 s{sT0}, s{sB}, {56*4096}
                s_lshl_b32 s{sT1}, s{sP}, 12
                s_add_u32 s{sT0}, s{sT0}, s{sT1}
                s_lshl_b32 s{sT1}, s{sW}, 10
                s_add_u32 s{sT0}, s{sT0}, s{sT1}
                s_add_u32 s{sT0}, s{sT0}, {WS_Y}
                """)
                throttle()
                g.vmem(f"buffer_load_dwordx4 {vr(vA)}, v{vL16}, {srd(sWS)}, s{sT0} offen {cfg.preflags}", "pre")
            elif op == "p":
                emit_poll()
            else:
                raise ValueError(op)

    issue(cfg.A1)
    desc_v()
    assert qi[0] == 14
    stamp("A_issued")

    g(f"s_lshl_b32 s{sT0}, s{sB}, 8")
    g(f"s_load_dword s{sTag}, s[26:27], s{sT0}")
    mk(sWS, 26, None, 0x10000000 if (dbg or cfg.lite) else 0x600000)
    mk(sOUT, 22, None, 3584)
    g(f"""
    s_mov_b32 s{sC}, 0x3db8aa3b
    s_mov_b32 s{sSelLo}, 0x01000100
    s_mov_b32 s{sSelHi}, 0x03020302
    """)
    half = vT0
    g(f"""
    v_and_b32 v{half}, 1, v{vL}
    v_lshlrev_b32 v{half}, 4, v{half}
    v_mov_b32 v{vT1}, 0xffff
    v_lshlrev_b32 v{half}, v{half}, v{vT1}
    v_bfe_u32 v{vP}, v{vL}, 1, 2
    v_bfe_u32 v{vP+1}, v{vL}, 1, 1
    v_bfe_u32 v{vP+2}, v{vL}, 3, 1
    v_lshl_add_u32 v{vP+2}, v{vP+2}, 1, v{vP+1}
    """)
    for r in range(4):
        g(f"v_cmp_eq_u32 s[{86+2*(r&3)}:{87+2*(r&3)}], {r}, v{vP}")
    for r in range(4):
        g(f"v_cndmask_b32 v{vMQ+r}, 0, v{half}, s[{86+2*r}:{87+2*r}]")
    for r in range(2):
        g(f"v_cmp_eq_u32 s[{86+2*r}:{87+2*r}], {r}, v{vP+1}")
    for r in range(2):
        g(f"v_cndmask_b32 v{vMH+r}, 0, v{half}, s[{86+2*r}:{87+2*r}]")
    for r in range(4):
        g(f"v_cmp_eq_u32 s[{86+2*r}:{87+2*r}], {r}, v{vP+2}")
    for r in range(4):
        g(f"v_cndmask_b32 v{vPM+r}, 0, v{half}, s[{86+2*r}:{87+2*r}]")
    g("s_waitcnt lgkmcnt(0)")
    g(f"s_add_u32 s{sTag}, s{sTag}, 0x9e3779b9")

    def xdup(i):
        sel = sSelHi if i & 1 else sSelLo
        r = vXd + (i >> 1)
        g(f"v_perm_b32 v{vXdup}, v{r}, v{r}, s{sel}")

    def prep_q(i):
        xdup(i)
        for r in range(4):
            g(f"v_and_b32 v{vAq + 4*(i&1) + r}, v{vXdup}, v{vMQ+r}")

    g.wait_vm("x")
    prep_q(0)
    for i in range(14):
        if i < 13:
            prep_q(i + 1)
        g.wait_vm(("wq", i))
        c = "0" if i == 0 else vr(vDq)
        g(f"v_mfma_f32_16x16x32_bf16 {vr(vDq)}, {vr(vAq + 4*(i&1))}, {vr(vWQd + 4*i)}, {c}")
    stamp("wq_landed")
    g(f"""
    v_lshrrev_b32 v{vT0}, 5, v{vL}
    s_lshl_b32 s{sT0}, s{sW}, 1
    v_add_u32 v{vT0}, s{sT0}, v{vT0}
    v_lshlrev_b32 v{vT0}, 8, v{vT0}
    v_and_b32 v{vT1}, 7, v{vL}
    v_lshl_add_u32 v{vT0}, v{vT1}, 5, v{vT0}
    v_bfe_u32 v{vT1}, v{vL}, 4, 1
    v_lshl_add_u32 v{vT0}, v{vT1}, 4, v{vT0}
    s_mov_b32 exec_lo, 0x00ff00ff
    s_mov_b32 exec_hi, 0xff00ff00
    ds_write_b128 v{vT0}, {vr(vDq)} offset:{L_QP}
    s_mov_b64 exec, -1
    s_waitcnt lgkmcnt(0)
    s_barrier
    """)
    g(f"s_cmp_lg_u32 s{sW}, 0\ns_cbranch_scc1 L_qpub_done")
    g(f"s_mov_b64 exec, 0xffff")
    for k in range(8):
        g(f"ds_read_b128 {vr(vP+4*k)}, v{vL16} offset:{L_QP + 256*k}")
    g(f"s_lshl_b32 s{sT0}, s{sGrp}, 11\ns_lshl_b32 s{sT1}, s{sS}, 8\ns_add_u32 s{sT0}, s{sT0}, s{sT1}\ns_add_u32 s{sT0}, s{sT0}, {WS_Q}")
    g(f"v_mov_b32 v{vD+1}, s{sTag}\nv_mov_b32 v{vD+3}, s{sTag}")
    g("s_waitcnt lgkmcnt(0)")
    for k in (1, 3, 5, 7):
        for j in range(4):
            g(f"v_add_f32 v{vP+4*(k-1)+j}, v{vP+4*(k-1)+j}, v{vP+4*k+j}")
    for k in (2, 6):
        for j in range(4):
            g(f"v_add_f32 v{vP+4*(k-2)+j}, v{vP+4*(k-2)+j}, v{vP+4*k+j}")
    for j in range(4):
        g(f"v_add_f32 v{vP+j}, v{vP+j}, v{vP+16+j}")
    g(f"v_cvt_pk_bf16_f32 v{vD}, v{vP}, v{vP+1}\nv_cvt_pk_bf16_f32 v{vD+2}, v{vP+2}, v{vP+3}")
    g.vmem(f"buffer_store_dwordx4 {vr(vD)}, v{vL16}, {srd(sWS)}, s{sT0} offen sc1", counted=False)
    g("s_mov_b64 exec, -1")
    g.label("L_qpub_done")
    stamp("q_published")

    if cfg.touch:
        g.comment("warm the address translation of the pages that the tail touches first")
        g(f"v_mov_b32 v{vT1}, 0")
        g(f"s_mul_i32 s{sT0}, s{sB}, {56*8192}\ns_add_u32 s{sT0}, s{sT0}, {WS_Y}")
        g.vmem(f"buffer_load_dword v{vD+8}, v{vT1}, {srd(sWS)}, s{sT0} offen sc1", "touch")
        g(f"s_add_u32 s{sT0}, s{sT0}, {56*8192-4}")
        g.vmem(f"buffer_load_dword v{vD+9}, v{vT1}, {srd(sWS)}, s{sT0} offen sc1", "touch")
        g.vmem(f"buffer_load_dword v{vD+10}, v{vT1}, {srd(sOUT)}, 0 offen sc1", "touch")
    issue(cfg.A2)
    assert wi[0] == 14
    def prep_h(i):
        xdup(i)
        for r in range(2):
            g(f"v_and_b32 v{vAh + 2*(i&1) + r}, v{vXdup}, v{vMH+r}")

    prep_h(0)
    for i in range(14):
        if i < 13:
            prep_h(i + 1)
        if i in (0, 6, 13):
            g.wait_vm(("w1", {0: 5, 6: 12, 13: 13}[i]))
        c = "0" if i == 0 else vr(vDh)
        g(f"v_mfma_f32_16x16x16_bf16 {vr(vDh)}, v[{vAh+2*(i&1)}:{vAh+2*(i&1)+1}], v[{vW1d+2*i}:{vW1d+2*i+1}], {c}")
    g(f"""
    v_lshrrev_b32 v{vT0}, 5, v{vL}
    s_lshl_b32 s{sT0}, s{sW}, 1
    v_add_u32 v{vT0}, s{sT0}, v{vT0}
    v_lshlrev_b32 v{vT0}, 7, v{vT0}
    v_and_b32 v{vT1}, 7, v{vL}
    v_lshl_add_u32 v{vT0}, v{vT1}, 4, v{vT0}
    s_mov_b32 exec_lo, 0x000000ff
    s_mov_b32 exec_hi, 0x0000ff00
    ds_write_b128 v{vT0}, {vr(vDh)} offset:{L_HP}
    s_mov_b64 exec, -1
    """)

    g.wait_vm("gate")
    acc = vP + 8
    for r in range(4):
        a, b2, c2, d2 = vP + 9, vP + 10, vP + 11, vP + 12
        g(f"""
        v_lshlrev_b32 v{a}, 16, v{vGx+r}
        v_and_b32 v{b2}, 0xffff0000, v{vGx+r}
        v_lshlrev_b32 v{c2}, 16, v{vGw+r}
        v_and_b32 v{d2}, 0xffff0000, v{vGw+r}
        v_mul_f32 v{a}, v{a}, v{c2}
        v_mul_f32 v{b2}, v{b2}, v{d2}
        v_cvt_pk_bf16_f32 v{a}, v{a}, v{b2}
        v_and_b32 v{b2}, 0xffff0000, v{a}
        v_lshlrev_b32 v{a}, 16, v{a}
        """)
        if r == 0:
            g(f"v_add_f32 v{acc}, v{a}, v{b2}")
        else:
            g(f"v_add_f32 v{acc}, v{acc}, v{a}\nv_add_f32 v{acc}, v{acc}, v{b2}")
    for sh in (8, 4, 2, 1):
        g(f"v_add_f32_dpp v{acc}, v{acc}, v{acc} row_ror:{sh} row_mask:0xf bank_mask:0xf")
    g(f"""
    v_readlane_b32 s{sT0}, v{acc}, 0
    v_readlane_b32 s{sT1}, v{acc}, 16
    v_readlane_b32 s{sT2}, v{acc}, 32
    v_readlane_b32 s{sT3}, v{acc}, 48
    v_mov_b32 v{acc}, s{sT0}
    v_add_f32 v{acc}, s{sT1}, v{acc}
    v_add_f32 v{acc}, s{sT2}, v{acc}
    v_add_f32 v{acc}, s{sT3}, v{acc}
    v_cvt_pk_bf16_f32 v{acc}, v{acc}, v{acc}
    v_and_b32 v{acc}, 0xffff0000, v{acc}
    v_mul_f32 v{acc}, 0xbfb8aa3b, v{acc}
    v_exp_f32 v{acc}, v{acc}
    v_add_f32 v{acc}, 1.0, v{acc}
    v_rcp_f32 v{acc}, v{acc}
    v_cvt_pk_bf16_f32 v{acc}, v{acc}, v{acc}
    v_and_b32 v{acc}, 0xffff0000, v{acc}
    v_sub_f32 v{acc+1}, 1.0, v{acc}
    v_cvt_pk_bf16_f32 v{acc+1}, v{acc+1}, v{acc+1}
    v_and_b32 v{acc+1}, 0xffff0000, v{acc+1}
    v_readfirstlane_b32 s{sG_}, v{acc}
    v_readfirstlane_b32 s{sOMG}, v{acc+1}
    """)

    issue(cfg.B)
    assert n_after_poll[0] is not None
    cfgP = kl[0]
    stamp("B_issued")

    def seq_load():
        if xi[0] < len(xops) and kl[0] < 128:
            for _ in range(cfg.xilv):
                x_op()
        kv_load()

    def advance(consumed, la):
        while kl[0] < min(consumed + la, 128):
            seq_load()

    def la_at(u):
        return max(cfg.la, cfgP - cfg.decay * u)

    thr[0] = cfg.thrS

    g(f"s_cmp_lg_u32 s{sW}, 0\ns_cbranch_scc1 L_qwait_done")
    n = min(len(g.vm) - n_after_poll[0], 63)
    g(f"s_waitcnt vmcnt({n})")
    g(f"s_mov_b32 s{sCnt}, {cfg.spin}")
    g.label("L_qcheck")
    for r in (1, 3, 5, 7):
        g(f"v_cmpx_eq_u32 vcc, s{sTag}, v{vP+r}")
    g("s_cmp_eq_u64 exec, -1")
    g("s_mov_b64 exec, -1")
    g("s_cbranch_scc1 L_qok")
    g(f"s_sub_u32 s{sCnt}, s{sCnt}, 1\ns_cbranch_scc1 L_qok")
    g("s_sleep 2")
    g.vmem(f"buffer_load_dwordx4 {vr(vP)}, v{vL16}, {srd(sWS)}, s{sT4} offen sc1", counted=False)
    g.vmem(f"buffer_load_dwordx4 {vr(vP+4)}, v{vL16}, {srd(sWS)}, s{sT4} offen offset:1024 sc1", counted=False)
    g("s_waitcnt vmcnt(0)")
    g("s_branch L_qcheck")
    g.label("L_qok")
    vstamp("#q_left", sCnt)
    g(f"v_lshlrev_b32 v{vT0}, 3, v{vL}")
    g(f"v_add_u32 v{vT0}, {L_QB}, v{vT0}")
    g(f"ds_write2_b32 v{vT0}, v{vP}, v{vP+2} offset0:0 offset1:1")
    g(f"ds_write2_b32 v{vT0}, v{vP+4}, v{vP+6} offset0:128 offset1:129")
    g.label("L_qwait_done")
    g("s_waitcnt lgkmcnt(0)\ns_barrier")
    stamp("q_ready")

    g(f"""
    v_bfe_u32 v{vT0}, v{vL}, 2, 1
    v_lshlrev_b32 v{vT0}, 9, v{vT0}
    v_lshrrev_b32 v{vT1}, 4, v{vL}
    v_lshl_add_u32 v{vT0}, v{vT1}, 6, v{vT0}
    v_and_b32 v{vT1}, 3, v{vL}
    v_lshl_add_u32 v{vT0}, v{vT1}, 4, v{vT0}
    ds_read_b128 {vr(vQ)}, v{vT0} offset:{L_QB}
    ds_read_b128 {vr(vQ+4)}, v{vT0} offset:{L_QB+256}
    """)
    g(f"s_cmp_lg_u32 s{sW}, 1\ns_cbranch_scc1 L_h_done")
    g("s_mov_b64 exec, 0xff")
    for k in range(8):
        g(f"ds_read_b128 {vr(vP+4*k)}, v{vL16} offset:{L_HP + 128*k}")
    g("s_waitcnt lgkmcnt(0)")
    for k in (1, 3, 5, 7):
        for j in range(4):
            g(f"v_add_f32 v{vP+4*(k-1)+j}, v{vP+4*(k-1)+j}, v{vP+4*k+j}")
    for k in (2, 6):
        for j in range(4):
            g(f"v_add_f32 v{vP+4*(k-2)+j}, v{vP+4*(k-2)+j}, v{vP+4*k+j}")
    for j in range(4):
        g(f"v_add_f32 v{vP+j}, v{vP+j}, v{vP+16+j}")
    for j in range(4):
        g(f"v_max_f32 v{vP+j}, 0, v{vP+j}")
    g(f"""
    v_cvt_pk_bf16_f32 v{vP+4}, v{vP}, v{vP+1}
    v_cvt_pk_bf16_f32 v{vP+5}, v{vP+2}, v{vP+3}
    v_lshlrev_b32 v{vT0}, 3, v{vL}
    ds_write_b64 v{vT0}, v[{vP+4}:{vP+5}] offset:{L_HB}
    s_mov_b64 exec, -1
    """)
    g.label("L_h_done")
    g("s_waitcnt lgkmcnt(0)")

    def qk_reduce(i):
        d = vD + 4 * (i & 3)
        s = vS + i
        g(f"v_mov_b32_dpp v{s}, v{d} quad_perm:[0,0,0,0] row_mask:0xf bank_mask:0xf")
        for c in (1, 2, 3):
            g(f"v_add_f32_dpp v{s}, v{d+c}, v{s} quad_perm:[{c},{c},{c},{c}] row_mask:0xf bank_mask:0xf")
        if i == 0:
            g(f"v_mov_b32 v{vM}, v{s}")
        else:
            g(f"v_max_f32 v{vM}, v{vM}, v{s}")

    for i in range(32):
        g.wait_vm(("kv", 2 * i + 1))
        d = vr(vD + 4 * (i & 3))
        g(f"v_mfma_f32_16x16x32_bf16 {d}, {ar(8*i)}, {vr(vQ)}, 0")
        g(f"v_mfma_f32_16x16x32_bf16 {d}, {ar(8*i+4)}, {vr(vQ+4)}, {d}")
        if i > 0:
            qk_reduce(i - 1)
        advance(2 * i + 2, la_at(i + 1) if i < 31 else max(la_at(32), cfg.lamid))
    qk_reduce(31)
    stamp("qk_done")
    g(f"""
    v_mov_b32 v{vT0}, v{vM}
    v_permlane32_swap_b32 v{vM}, v{vT0}
    v_max_f32 v{vM}, v{vM}, v{vT0}
    v_mov_b32 v{vT0}, v{vM}
    v_permlane16_swap_b32 v{vM}, v{vT0}
    v_max_f32 v{vM}, v{vM}, v{vT0}
    v_bfe_u32 v{vT0}, v{vL}, 2, 1
    v_lshlrev_b32 v{vT1}, 4, v{vT0}
    s_lshl_b32 s{sT0}, s{sW}, 2
    v_add_u32 v{vT0}, s{sT0}, v{vT1}
    s_mov_b64 exec, 0x11
    ds_write_b32 v{vT0}, v{vM} offset:{L_MX}
    s_mov_b64 exec, -1
    """)
    while xi[0] < len(xops):
        x_op()
    g.wait_vm("dma")
    g(f"""
    s_waitcnt lgkmcnt(0)
    s_barrier
    ds_read_b128 {vr(vP)}, v{vT1} offset:{L_MX}
    """)
    for _ in range(cfg.midextra):
        seq_load()
    vTr, vTr2 = vD + 12, vD + 13
    sColB = 12
    g(f"""
    s_cmp_eq_u32 s{sW}, 2
    s_cselect_b32 s{sColB}, 320, 0
    s_cmp_eq_u32 s{sW}, 3
    s_cselect_b32 s{sColB}, 608, s{sColB}
    v_lshrrev_b32 v{vP+4}, 4, v{vL}
    v_bfe_u32 v{vTr}, v{vL}, 2, 2
    v_lshl_add_u32 v{vTr}, v{vP+4}, 3, v{vTr}
    v_mul_u32_u24 v{vTr}, 896, v{vTr}
    v_and_b32 v{vP+6}, 3, v{vL}
    v_lshl_add_u32 v{vTr}, v{vP+6}, 3, v{vTr}
    v_add_u32 v{vTr}, s{sColB}, v{vTr}
    v_lshlrev_b32 v{vP+4}, 4, v{vP+4}
    ds_read_b128 {vr(vA)}, v{vP+4} offset:{L_HB}
    v_add_u32 v{vTr2}, {L_W2}, v{vTr}
    s_waitcnt lgkmcnt(0)
    """)
    for c in range(NT):
        for hf in range(2):
            g(f"ds_read_b64_tr_b16 {ar(aW2 + 4*c + 2*hf, 2)}, v{vTr2} offset:{hf*3584 + c*32}")
    g(f"""
    v_max3_f32 v{vM}, v{vP}, v{vP+1}, v{vP+2}
    v_max_f32 v{vM}, v{vM}, v{vP+3}
    v_mul_f32 v{vM}, s{sC}, v{vM}
    """)
    for i in range(0, 32, 4):
        for j in range(4):
            g(f"v_fma_f32 v{vS+i+j}, v{vS+i+j}, s{sC}, -v{vM}")
        for j in range(4):
            g(f"v_exp_f32 v{vS+i+j}, v{vS+i+j}")
        for j in range(4):
            if i + j < 2:
                g(f"v_mov_b32 v{vLacc+i+j}, v{vS+i+j}")
            else:
                g(f"v_add_f32 v{vLacc+(j&1)}, v{vLacc+(j&1)}, v{vS+i+j}")
        for j in range(4):
            g(f"v_cvt_pk_bf16_f32 v{vS+i+j}, v{vS+i+j}, v{vS+i+j}")
        for _ in range(cfg.midloads):
            seq_load()
    g(f"""
    v_add_f32 v{vLacc}, v{vLacc}, v{vLacc+1}
    v_bfe_u32 v{vT1}, v{vL}, 2, 1
    v_mov_b32 v{vLacc+1}, v{vLacc}
    v_lshlrev_b32 v{vT1}, 4, v{vT1}
    v_permlane32_swap_b32 v{vLacc}, v{vLacc+1}
    s_lshl_b32 s{sT0}, s{sW}, 2
    v_add_f32 v{vLacc}, v{vLacc}, v{vLacc+1}
    v_add_u32 v{vT1}, s{sT0}, v{vT1}
    v_mov_b32 v{vLacc+1}, v{vLacc}
    v_permlane16_swap_b32 v{vLacc}, v{vLacc+1}
    v_add_f32 v{vLacc}, v{vLacc}, v{vLacc+1}
    s_mov_b64 exec, 0x11
    ds_write_b32 v{vT1}, v{vLacc} offset:{L_LP}
    s_mov_b64 exec, -1
    """)
    g("s_waitcnt lgkmcnt(0)")
    if cfg.earlyml:
        g("s_barrier")
    for _ in range(cfg.midextra):
        seq_load()
    for t in range(2):
        for c in range(NT):
            for hf in range(2):
                g(f"ds_read_b64_tr_b16 {ar(aWO + (t*NT+c)*4 + 2*hf, 2)}, v{vTr} offset:{L_WO + t*28672 + hf*3584 + c*32}")
    g(f"""
    s_mov_b32 s86, 0xffff0000
    s_mov_b32 s87, 0xffff0000
    s_mov_b32 s88, 0
    s_mov_b32 s89, -1
    """)
    vG0, vG1, vG2 = vD, vD + 4, vD + 8
    for c in range(8):
        g(f"v_mfma_f32_16x16x32_bf16 {vr(vP+4*c)}, {vr(vA)}, {ar(aW2+4*c)}, 0")
    vYB = vTr2 + 1
    for G in (vG0, vG1, vG2):
        g(f"v_mov_b32 v{G+1}, s{sTag}\nv_mov_b32 v{G+3}, s{sTag}")
    g(f"""
    v_cndmask_b32 v{vT0}, v{vP}, v{vP+4}, s[86:87]
    v_cndmask_b32 v{vT1}, v{vP+8}, v{vP+12}, s[86:87]
    v_cndmask_b32 v{vYB}, v{vT0}, v{vT1}, s[88:89]
    v_cndmask_b32 v{vT0}, v{vP+16}, v{vP+20}, s[86:87]
    v_cndmask_b32 v{vT1}, v{vP+24}, v{vP+28}, s[86:87]
    v_cndmask_b32 v{vYB+1}, v{vT0}, v{vT1}, s[88:89]
    """)
    for c in (8, 9):
        g(f"v_mfma_f32_16x16x32_bf16 {vr(vP+4*(c-8))}, {vr(vA)}, {ar(aW2+4*c)}, 0")
    vYB2 = vQ + 7
    g(f"v_mul_f32 v{vYB}, s{sOMG}, v{vYB}\nv_mul_f32 v{vYB+1}, s{sOMG}, v{vYB+1}")
    g(f"v_cndmask_b32 v{vYB2}, v{vP}, v{vP+4}, s[86:87]")
    g(f"v_mul_f32 v{vYB2}, s{sOMG}, v{vYB2}")
    if cfg.earlyml:
        g.comment("wave 2 publishes the fast copy of (max, sum) per head now; the tail only has to carry the o values")
        g(f"s_cmp_lg_u32 s{sW}, 2\ns_cbranch_scc1 L_ml_done")
        vE = vP + 24
        g(f"""
        v_bfe_u32 v{vT1}, v{vL}, 2, 1
        v_lshlrev_b32 v{vT1}, 4, v{vT1}
        s_mov_b64 exec, 0x11
        ds_read_b128 {vr(vP+12)}, v{vT1} offset:{L_LP}
        s_lshl_b32 s{sT0}, s{sGrp}, 10
        s_lshl_b32 s{sT1}, s{sS}, 7
        s_add_u32 s{sT0}, s{sT0}, s{sT1}
        s_add_u32 s{sT0}, s{sT0}, {WS_ML}
        v_mov_b32 v{vE}, v{vM}
        v_mov_b32 v{vE+1}, s{sTag}
        v_mov_b32 v{vE+3}, s{sTag}
        s_waitcnt lgkmcnt(0)
        v_add_f32 v{vP+12}, v{vP+12}, v{vP+13}
        v_add_f32 v{vP+14}, v{vP+14}, v{vP+15}
        v_add_f32 v{vE+2}, v{vP+12}, v{vP+14}
        """)
        g.vmem(f"buffer_store_dwordx4 {vr(vE)}, v{vT1}, {srd(sWS)}, s{sT0} offen {cfg.oflags}", counted=False)
        g("s_mov_b64 exec, -1")
        g.label("L_ml_done")
    stamp("mid_done")

    for _ in range(cfg.midextra):
        seq_load()
    vAc, vLp, vRd, vOad, vY0, vY1, vY2 = vQ, vQ + 1, vQ + 2, vQ + 3, vQ + 4, vQ + 5, vQ + 6
    vObRd, vObWr, vMlRd, vMlWr = vWq, vW1, vX, vKoff
    sOst, sOld, sMlSt, sMlLd, sYst, sYld, sYld2, sOutOff, sOst2 = 4, 5, 6, 7, 8, 9, 10, 11, 13
    g(f"""
    v_lshrrev_b32 v{vT0}, 4, v{vL}
    v_and_b32 v{vT1}, 1, v{vT0}
    s_lshl_b32 s{sT0}, s{sW}, 11
    v_lshlrev_b32 v{vAc}, 10, v{vT1}
    v_add_u32 v{vAc}, s{sT0}, v{vAc}
    v_lshrrev_b32 v{vT0}, 1, v{vT0}
    v_lshl_add_u32 v{vAc}, v{vT0}, 4, v{vAc}
    v_and_b32 v{vT0}, 15, v{vL}
    v_lshl_add_u32 v{vAc}, v{vT0}, 5, v{vAc}
    """)
    g(f"""
    s_cmp_eq_u32 s{sW}, 1
    s_cselect_b32 s{sT0}, 0, s{sW}
    s_lshl_b32 s{sT1}, s{sT0}, 9
    v_lshlrev_b32 v{vRd}, 3, v{vL}
    v_add_u32 v{vRd}, s{sT1}, v{vRd}
    s_lshl_b32 s{sT1}, s{sT0}, 13
    v_lshrrev_b32 v{vT0}, 5, v{vL}
    v_lshlrev_b32 v{vOad}, 12, v{vT0}
    v_add_u32 v{vOad}, s{sT1}, v{vOad}
    v_and_b32 v{vT0}, 31, v{vL}
    v_lshl_add_u32 v{vOad}, v{vT0}, 4, v{vOad}
    """)
    g(f"""
    s_lshr_b32 s{sT0}, s{sColB}, 4
    v_lshrrev_b32 v{vY0}, 3, v{vL}
    v_add_u32 v{vY0}, s{sT0}, v{vY0}
    v_lshlrev_b32 v{vY0}, 12, v{vY0}
    v_bfe_u32 v{vY1}, v{vL}, 1, 2
    v_lshl_add_u32 v{vY0}, v{vY1}, 4, v{vY0}
    v_add_u32 v{vY1}, 32768, v{vY0}
    v_add_u32 v{vY2}, 65536, v{vY0}
    v_lshrrev_b32 v{vObRd}, 4, v{vL}
    v_lshlrev_b32 v{vObRd}, 4, v{vObRd}
    v_and_b32 v{vObWr}, 31, v{vL}
    v_lshlrev_b32 v{vObWr}, 2, v{vObWr}
    v_lshrrev_b32 v{vMlRd}, 5, v{vL}
    v_lshlrev_b32 v{vMlRd}, 7, v{vMlRd}
    v_bfe_u32 v{vMlWr}, v{vL}, 2, 1
    v_lshlrev_b32 v{vMlWr}, 4, v{vMlWr}
    s_lshl_b32 s{sOst}, s{sGrp}, 15
    s_lshl_b32 s{sT1}, s{sS}, 9
    s_add_u32 s{sOld}, s{sOst}, {WS_O}
    s_add_u32 s{sOst}, s{sOld}, s{sT1}
    s_add_u32 s{sOst2}, s{sOst}, 8192
    s_lshl_b32 s{sT1}, s{sS}, 12
    s_add_u32 s{sOld}, s{sOld}, s{sT1}
    s_lshl_b32 s{sMlSt}, s{sGrp}, 10
    s_add_u32 s{sMlSt}, s{sMlSt}, {WS_ML}
    s_lshr_b32 s{sT1}, s{sS}, 2
    s_lshl_b32 s{sT1}, s{sT1}, 4
    s_add_u32 s{sMlLd}, s{sMlSt}, s{sT1}
    s_lshl_b32 s{sT1}, s{sS}, 7
    s_add_u32 s{sMlSt}, s{sMlSt}, s{sT1}
    s_mul_i32 s{sYst}, s{sB}, {56*4096}
    s_add_u32 s{sYst}, s{sYst}, {WS_Y}
    s_lshl_b32 s{sT1}, s{sP}, 12
    s_add_u32 s{sYld}, s{sYst}, s{sT1}
    s_lshl_b32 s{sT1}, s{sP}, 6
    s_add_u32 s{sYst}, s{sYst}, s{sT1}
    s_mul_i32 s{sOutOff}, s{sB}, 896
    s_lshl_b32 s{sT1}, s{sP}, 4
    s_add_u32 s{sOutOff}, s{sOutOff}, s{sT1}
    """)

    g("s_mov_b32 s91, 0")
    for _ in range(cfg.midextra):
        seq_load()
    def prep_p(i):
        for r in range(4):
            g(f"v_and_b32 v{vA + 4*(i&1) + r}, v{vS+i}, v{vPM+r}")

    prep_p(0)
    for i in range(32):
        a = vr(vA + 4 * (i & 1))
        if i < 31:
            prep_p(i + 1)
        g.wait_vm(("kv", 64 + 2 * i + 1))
        for t, accr in ((0, vAcc0), (1, vAcc1)):
            kk = 2 * i + t
            src = vr(128 + 4 * kk) if kk < 32 else ar(4 * (kk - 32))
            c = "0" if i == 0 else vr(accr)
            g(f"v_mfma_f32_16x16x32_bf16 {vr(accr)}, {a}, {src}, {c}")
        advance(64 + 2 * i + 2, cfg.la)
    assert kl[0] == 128
    stamp("pv_done")
    if cfg.lite2:
        g("s_memrealtime s[96:97]")
    if "E" in cfg.ablate:
        g("s_branch L_finish")

    g(f"""
    ds_write_b128 v{vAc}, {vr(vAcc0)} offset:{L_AC}
    ds_write_b128 v{vAc}, {vr(vAcc1)} offset:{L_AC+512}
    s_waitcnt lgkmcnt(0)
    s_barrier
    """)
    g(f"s_cmp_eq_u32 s{sW}, 0\ns_cbranch_scc1 L_hop1_poll")

    def o_block(base, ldsoff):
        for w in range(4):
            g(f"ds_read_b64 v[{base+2*w}:{base+2*w+1}], v{vRd} offset:{L_AC + 2048*w + ldsoff}")

    def o_sum(base):
        g(f"""
        v_add_f32 v{base}, v{base}, v{base+2}
        v_add_f32 v{base+1}, v{base+1}, v{base+3}
        v_add_f32 v{base+4}, v{base+4}, v{base+6}
        v_add_f32 v{base+5}, v{base+5}, v{base+7}
        v_add_f32 v{base+8}, v{base}, v{base+4}
        v_add_f32 v{base+10}, v{base+1}, v{base+5}
        """)

    vG = vP + 24
    fast = cfg.oflags
    o_block(vP, 0)
    g(f"v_mov_b32 v{vP+9}, s{sTag}\nv_mov_b32 v{vP+11}, s{sTag}")
    g(f"s_cmp_lg_u32 s{sW}, 1\ns_cbranch_scc1 L_o_single")
    o_block(vP + 12, 512)
    g(f"v_mov_b32 v{vP+21}, s{sTag}\nv_mov_b32 v{vP+23}, s{sTag}")
    g("s_waitcnt lgkmcnt(4)")
    o_sum(vP)
    g.vmem(f"buffer_store_dwordx4 {vr(vP+8)}, v{vOad}, {srd(sWS)}, s{sOst} offen {fast}", counted=False)
    g("s_waitcnt lgkmcnt(0)")
    o_sum(vP + 12)
    g.vmem(f"buffer_store_dwordx4 {vr(vP+20)}, v{vOad}, {srd(sWS)}, s{sOst2} offen {fast}", counted=False)
    g("s_branch L_o_done")
    g.label("L_o_single")
    if not cfg.earlyml:
        g.comment("wave 2 also publishes (max, sum) per head")
        g(f"""
        s_mov_b64 exec, 0x11
        ds_read_b128 {vr(vP+12)}, v{vMlWr} offset:{L_LP}
        v_mov_b32 v{vG}, v{vM}
        v_mov_b32 v{vG+1}, s{sTag}
        v_mov_b32 v{vG+3}, s{sTag}
        s_mov_b64 exec, -1
        s_waitcnt lgkmcnt(1)
        """)
    else:
        g("s_waitcnt lgkmcnt(0)")
    o_sum(vP)
    g.vmem(f"buffer_store_dwordx4 {vr(vP+8)}, v{vOad}, {srd(sWS)}, s{sOst} offen {fast}", counted=False)
    if not cfg.earlyml:
        g(f"s_cmp_lg_u32 s{sW}, 2\ns_cbranch_scc1 L_o_done")
        g(f"""
        s_mov_b64 exec, 0x11
        s_waitcnt lgkmcnt(0)
        v_add_f32 v{vP+12}, v{vP+12}, v{vP+13}
        v_add_f32 v{vP+14}, v{vP+14}, v{vP+15}
        v_add_f32 v{vG+2}, v{vP+12}, v{vP+14}
        """)
        g.vmem(f"buffer_store_dwordx4 {vr(vG)}, v{vMlWr}, {srd(sWS)}, s{sMlSt} offen {fast}", counted=False)
        g("s_mov_b64 exec, -1")
    g.label("L_o_done")
    stamp("o_published")
    g("s_barrier")
    g("s_branch L_hop1_join")

    def slow_copies(tag):
        g(f"s_add_u32 s{sT0}, s{sOst}, {WS_SLOW}")
        g.vmem(f"buffer_store_dwordx4 {vr(vP+8)}, v{vOad}, {srd(sWS)}, s{sT0} offen sc1", counted=False)
        g(f"s_cmp_lg_u32 s{sW}, 1\ns_cbranch_scc1 L_slow1_{tag}")
        g(f"s_add_u32 s{sT0}, s{sOst2}, {WS_SLOW}")
        g.vmem(f"buffer_store_dwordx4 {vr(vP+20)}, v{vOad}, {srd(sWS)}, s{sT0} offen sc1", counted=False)
        g.label(f"L_slow1_{tag}")
        g(f"s_cmp_lg_u32 s{sW}, 2\ns_cbranch_scc1 L_slow2_{tag}")
        g(f"s_add_u32 s{sT0}, s{sMlSt}, {WS_SLOW}\ns_mov_b64 exec, 0x11")
        g.vmem(f"buffer_store_dwordx4 {vr(vG)}, v{vMlWr}, {srd(sWS)}, s{sT0} offen sc1", counted=False)
        g("s_mov_b64 exec, -1")
        g.label(f"L_slow2_{tag}")

    g.label("L_hop1_poll")
    SETS = [128, 160, 192][:cfg.nsets]
    RL, R0, R1 = vAcc0, vAcc0 + 1, vAcc0 + 2
    X = vAcc1
    B0 = SETS[0]
    o_loads = [(vL16, sOld, 1024 * i) for i in range(4)]
    ml_loads = [(vMlRd, sMlLd, 256 * i) for i in range(4)]
    h1_loads = o_loads + ml_loads
    mreg = [B0 + 16 + 4 * i for i in range(4)]

    def h1_weights():
        MX, TT = vT0, vT1
        m = mreg
        g(f"""
        v_max3_f32 v{MX}, v{m[0]}, v{m[1]}, v{m[2]}
        v_max_f32 v{MX}, v{MX}, v{m[3]}
        v_mov_b32 v{TT}, v{MX}
        v_permlane32_swap_b32 v{MX}, v{TT}
        v_max_f32 v{MX}, v{MX}, v{TT}
        """)
        for i in range(4):
            g(f"v_sub_f32 v{m[i]}, v{m[i]}, v{MX}")
        for i in range(4):
            g(f"v_exp_f32 v{m[i]}, v{m[i]}")
        g(f"v_mul_f32 v{RL}, v{m[0]}, v{m[0]+2}")
        for i in range(1, 4):
            g(f"v_fmac_f32 v{RL}, v{m[i]}, v{m[i]+2}")
        g(f"""
        v_mov_b32 v{X}, v{RL}
        v_permlane32_swap_b32 v{RL}, v{X}
        v_add_f32 v{RL}, v{RL}, v{X}
        v_rcp_f32 v{RL}, v{RL}
        """)
        for i in range(4):
            g(f"v_mul_f32 v{m[i]}, v{m[i]}, v{RL}")

    g("s_mov_b32 s90, 0")
    poll_masked("m1", B0 + 16, ml_loads, cfg.sleep1, bound=cfg.nfast, timeout="L_ml_late")
    h1_weights()
    g.label("L_ml_join")
    g("s_barrier")
    g(f"s_cmp_lg_u32 s90, 0\ns_cbranch_scc1 L_h1_slow")
    poll_masked("h1", B0, o_loads, cfg.sleep1, bound=cfg.nfast, timeout="L_h1_slow")
    g.label("L_h1_have")
    g(f"v_mul_f32 v{R0}, v{mreg[0]}, v{B0}\nv_mul_f32 v{R1}, v{mreg[0]}, v{B0+2}")
    for i in range(1, 4):
        g(f"v_fmac_f32 v{R0}, v{mreg[i]}, v{B0+4*i}\nv_fmac_f32 v{R1}, v{mreg[i]}, v{B0+4*i+2}")
    stamp("hop1_seen")
    vstamp("#h1_left", sCnt)
    if cfg.lite2:
        g("s_memrealtime s[90:91]")
    g(f"""
    v_mov_b32 v{X+1}, v{R0}
    v_mov_b32 v{X+2}, v{R1}
    v_mov_b32 v{vT1}, 0
    v_permlane32_swap_b32 v{R0}, v{X+1}
    v_permlane32_swap_b32 v{R1}, v{X+2}
    v_mov_b32 v{vT0}, 0
    v_add_f32 v{R0}, v{R0}, v{X+1}
    v_add_f32 v{R1}, v{R1}, v{X+2}
    v_cvt_pk_bf16_f32 v{R0}, v{R0}, v{R1}
    ds_write_b32 v{vObWr}, v{R0} offset:{L_OB}
    """)
    g(f"ds_write_b32 v{vT0}, v{vT1} offset:{L_ST}")
    g.label("L_hop1_join")
    g("s_waitcnt lgkmcnt(0)\ns_barrier")
    g(f"s_cmp_eq_u32 s{sW}, 0\ns_cbranch_scc1 L_hop2")
    vYD = 16
    g(f"""
    v_mov_b32 v{vT0}, 0
    ds_read_b32 v{vT1}, v{vT0} offset:{L_ST}
    ds_read_b128 {vr(vA)}, v{vObRd} offset:{L_OB}
    ds_read_b128 {vr(vA+4)}, v{vObRd} offset:{L_OB+64}
    s_waitcnt lgkmcnt(2)
    v_readfirstlane_b32 s{sT1}, v{vT1}
    s_cmp_lg_u32 s{sT1}, 0
    s_cbranch_scc1 L_y_slow
    s_waitcnt lgkmcnt(1)
    """)
    for c in range(NT):
        g(f"v_mfma_f32_16x16x32_bf16 {vr(vYD+4*c)}, {vr(vA)}, {ar(aWO+4*c)}, 0")
    g("s_waitcnt lgkmcnt(0)")
    for c in range(NT):
        g(f"v_mfma_f32_16x16x32_bf16 {vr(vYD+4*c)}, {vr(vA+4)}, {ar(aWO+4*NT+4*c)}, {vr(vYD+4*c)}")
    g(f"""
    s_mov_b32 s{sT2}, 0x55555555
    s_cmp_eq_u32 s{sW}, 1
    s_cselect_b32 s{sT0}, s{sT2}, 0x5555
    """)
    for k, (G, vY, yb) in enumerate(((vG0, vY0, vYB), (vG1, vY1, vYB + 1))):
        d = vYD + 16 * k
        g(f"""
        v_cndmask_b32 v{vT0}, v{d}, v{d+4}, s[86:87]
        v_cndmask_b32 v{vT1}, v{d+8}, v{d+12}, s[86:87]
        v_cndmask_b32 v{G}, v{vT0}, v{vT1}, s[88:89]
        v_fma_f32 v{G}, v{G}, s{sG_}, v{yb}
        """)
    g(f"""
    v_cndmask_b32 v{vG2}, v{vYD+32}, v{vYD+36}, s[86:87]
    v_fma_f32 v{vG2}, v{vG2}, s{sG_}, v{vYB2}
    """)
    for G in (vG0, vG1, vG2):
        g(f"v_mov_b32_dpp v{G+2}, v{G} quad_perm:[1,1,3,3] row_mask:0xf bank_mask:0xf")
    g(f"s_mov_b32 exec_lo, s{sT2}\ns_mov_b32 exec_hi, s{sT2}")
    g.vmem(f"buffer_store_dwordx4 {vr(vG0)}, v{vY0}, {srd(sWS)}, s{sYst} offen sc1", counted=False)
    g.vmem(f"buffer_store_dwordx4 {vr(vG1)}, v{vY1}, {srd(sWS)}, s{sYst} offen sc1", counted=False)
    g(f"s_mov_b32 exec_lo, s{sT0}\ns_mov_b32 exec_hi, 0")
    g.vmem(f"buffer_store_dwordx4 {vr(vG2)}, v{vY2}, {srd(sWS)}, s{sYst} offen sc1", counted=False)
    g("s_mov_b64 exec, -1")
    stamp("y_published")
    g(f"s_cmp_lg_u32 s91, 0\ns_cbranch_scc1 L_finish")
    slow_copies("late")
    g("s_branch L_finish")

    g.label("L_y_slow")
    g("s_waitcnt lgkmcnt(0)")
    slow_copies("early")
    g("s_mov_b32 s91, 1")
    g("s_barrier")
    g("s_branch L_hop1_join")
    g.label("L_h1_slow")
    if cfg.probe == "slow:0":
        g("s_mov_b32 s101, 1")
    g(f"v_mov_b32 v{vT1}, 1\nv_mov_b32 v{vT0}, 0\nds_write_b32 v{vT0}, v{vT1} offset:{L_ST}")
    g("s_waitcnt lgkmcnt(0)\ns_barrier")
    g("s_barrier")
    g(f"s_xor_b32 s{sOld}, s{sOld}, {WS_SLOW}\ns_xor_b32 s{sMlLd}, s{sMlLd}, {WS_SLOW}")
    poll_masked("h1s", B0, h1_loads, cfg.sleep1, toggle=(sOld, sMlLd))
    h1_weights()
    g("s_branch L_h1_have")
    g.label("L_ml_late")
    g("s_mov_b32 s90, 1")
    g("s_branch L_ml_join")
    g.label("L_hop2")
    g(f"s_cmp_ge_u32 s{sP}, 56\ns_cbranch_scc1 L_finish")

    def h2_reduce(base):
        for off in (0, 2):
            g(f"v_add_f32 v{base+off}, v{base+off}, v{base+4+off}\nv_add_f32 v{base+8+off}, v{base+8+off}, v{base+12+off}")
        g(f"v_add_f32 v{vP}, v{base}, v{base+8}\nv_add_f32 v{vP+2}, v{base+2}, v{base+10}")

    poll_masked("h2", SETS[0], [(vL16, sYld, 1024 * i) for i in range(4)], cfg.sleep2)
    h2_reduce(SETS[0])
    stamp("hop2_seen")
    vstamp("#h2_left", sCnt)
    if cfg.lite2:
        g("s_memrealtime s[92:93]")
    for sh in (4, 8):
        g(f"""
        v_add_f32_dpp v{vP}, v{vP}, v{vP} row_ror:{sh} row_mask:0xf bank_mask:0xf
        v_add_f32_dpp v{vP+2}, v{vP+2}, v{vP+2} row_ror:{sh} row_mask:0xf bank_mask:0xf
        """)
    g(f"""
    v_mov_b32 v{vP+1}, v{vP}
    v_mov_b32 v{vP+3}, v{vP+2}
    v_permlane16_swap_b32 v{vP}, v{vP+1}
    v_permlane16_swap_b32 v{vP+2}, v{vP+3}
    v_add_f32 v{vP}, v{vP}, v{vP+1}
    v_add_f32 v{vP+2}, v{vP+2}, v{vP+3}
    v_mov_b32 v{vP+1}, v{vP}
    v_mov_b32 v{vP+3}, v{vP+2}
    v_permlane32_swap_b32 v{vP}, v{vP+1}
    v_permlane32_swap_b32 v{vP+2}, v{vP+3}
    v_add_f32 v{vP}, v{vP}, v{vP+1}
    v_add_f32 v{vP+2}, v{vP+2}, v{vP+3}
    v_lshlrev_b32 v{vT0}, 2, v{vL}
    v_cvt_pk_bf16_f32 v{vP}, v{vP}, v{vP+2}
    s_mov_b64 exec, 0xf
    """)
    if probe:
        g(f"s_cmp_eq_u32 s101, 1\ns_cbranch_scc0 L_probe_ok\nv_mov_b32 v{vP}, 0x7fc07fc0")
        g.label("L_probe_ok")
    g.vmem(f"buffer_store_dword v{vP}, v{vT0}, {srd(sOUT)}, s{sOutOff} offen {cfg.outflags}", counted=False)
    g(f"s_cmp_lg_u32 s{sP}, 0\ns_cbranch_scc1 L_finish")
    g(f"""
    s_mov_b64 exec, 1
    s_lshl_b32 s{sT0}, s{sB}, 8
    v_mov_b32 v{vP+4}, s{sTag}
    v_mov_b32 v{vP+5}, 0
    """)
    g.vmem(f"buffer_store_dword v{vP+4}, v{vP+5}, {srd(sWS)}, s{sT0} offen sc1", counted=False)
    g.label("L_finish")
    if dbg:
        g("s_mov_b64 exec, -1")
        stamp("end")
        g(f"""
        s_lshl_b32 s{sT0}, s2, 2
        s_add_u32 s{sT0}, s{sT0}, s{sW}
        s_lshl_b32 s{sT0}, s{sT0}, 8
        s_add_u32 s{sT0}, s{sT0}, {WS_DBG}
        v_lshlrev_b32 v{vT0}, 2, v{vL}
        buffer_store_dword v{vStamp}, v{vT0}, {srd(sWS)}, s{sT0} offen
        s_cmp_lg_u32 s{sW}, 0
        s_cbranch_scc1 L_exit
        s_memrealtime s[98:99]
        s_waitcnt lgkmcnt(0)
        v_mov_b32 v{vP}, s100
        v_mov_b32 v{vP+1}, s101
        v_mov_b32 v{vP+2}, s98
        v_mov_b32 v{vP+3}, s99
        s_lshl_b32 s{sT0}, s2, 4
        s_add_u32 s{sT0}, s{sT0}, {WS_T}
        v_mov_b32 v{vT0}, 0
        s_mov_b64 exec, 1
        buffer_store_dwordx4 {vr(vP)}, v{vT0}, {srd(sWS)}, s{sT0} offen
        """)
    if cfg.lite2:
        g(f"""
        s_mov_b64 exec, -1
        s_memrealtime s[98:99]
        s_waitcnt lgkmcnt(0)
        v_mov_b32 v{vP}, s96
        v_mov_b32 v{vP+1}, s90
        v_mov_b32 v{vP+2}, s92
        v_mov_b32 v{vP+3}, s98
        s_lshl_b32 s{sT0}, s2, 2
        s_add_u32 s{sT0}, s{sT0}, s{sW}
        s_lshl_b32 s{sT0}, s{sT0}, 4
        s_add_u32 s{sT0}, s{sT0}, {WS_DBG}
        v_mov_b32 v{vT0}, 0
        s_mov_b64 exec, 1
        buffer_store_dwordx4 {vr(vP)}, v{vT0}, {srd(sWS)}, s{sT0} offen
        """)
    if cfg.lite:
        g(f"""
        s_mov_b64 exec, -1
        s_cmp_lg_u32 s{sW}, 0
        s_cbranch_scc1 L_exit
        s_memrealtime s[98:99]
        s_waitcnt lgkmcnt(0)
        v_mov_b32 v{vP}, s100
        v_mov_b32 v{vP+1}, s101
        v_mov_b32 v{vP+2}, s98
        v_mov_b32 v{vP+3}, s99
        s_lshl_b32 s{sT0}, s2, 4
        s_add_u32 s{sT0}, s{sT0}, {WS_T}
        v_mov_b32 v{vT0}, 0
        s_mov_b64 exec, 1
        buffer_store_dwordx4 {vr(vP)}, v{vT0}, {srd(sWS)}, s{sT0} offen
        """)
    if cfg.hdebug:
        g(f"""
        s_mov_b64 exec, -1
        s_memrealtime s[98:99]
        s_waitcnt lgkmcnt(0)
        s_not_b32 s100, s100
        v_writelane_b32 v{vStamp}, s98, 0
        v_writelane_b32 v{vStamp}, s100, 1
        s_mov_b32 s28, s24
        s_mov_b32 s29, s25
        s_mov_b32 s30, 256
        s_mov_b32 s31, 0x20000
        v_lshlrev_b32 v{vT0}, 2, v{vL}
        s_mov_b64 exec, 0xffff
        buffer_atomic_umax v{vStamp}, v{vT0}, s[28:31], 0 offen
        """)
    g.label("L_exit")
    g("s_endpgm")
    body = g.finalize()

    ref = open("cdna_kernels/" + NAME + ".s.ref").read().split("\n")
    head = [l for l in ref if l.startswith(";") and "@launch" not in l and "Override" not in l and "grid=ceil" not in l]
    head = head[:head.index(next(l for l in head if "d_ws" in l)) + 1]
    txt = "\n".join(head) + "\n"
    txt += f"; @launch grid=(256,1,1) block=(256,1,1) lds={LDS_BYTES}\n"
    txt += '.amdgcn_target "amdgcn-amd-amdhsa--gfx950"\n.text\n'
    txt += f".globl {NAME}_kernel\n.p2align 8\n.type {NAME}_kernel,@function\n{NAME}_kernel:\n"
    txt += body
    txt += f""".section .rodata,"a"
.p2align 6
.amdhsa_kernel {NAME}_kernel
  .amdhsa_next_free_vgpr 512
  .amdhsa_next_free_sgpr 102
  .amdhsa_accum_offset 256
  .amdhsa_group_segment_fixed_size 0
  .amdhsa_kernarg_size 96
  .amdhsa_user_sgpr_count 2
  .amdhsa_user_sgpr_kernarg_segment_ptr 1
  .amdhsa_system_sgpr_workgroup_id_x 1
.end_amdhsa_kernel
"""
    return txt, stamp_names, g.nops


def parse(argv=None):
    ap = argparse.ArgumentParser()
    ap.add_argument("-o", default="cdna_kernels/" + NAME + ".s")
    ap.add_argument("--debug", action="store_true")
    ap.add_argument("--probe", default="")
    ap.add_argument("--ablate", default="")
    ap.add_argument("--lite", action="store_true")
    ap.add_argument("--lite2", action="store_true")
    ap.add_argument("--hdebug", action="store_true")
    ap.add_argument("--hdebug_sel", default="")
    ap.add_argument("--kflags", default="nt")
    ap.add_argument("--vflags", default="nt")
    ap.add_argument("--xilv", type=int, default=1)
    ap.add_argument("--A1", default="KKX" + "QK" * 14 + "WK" * 6)
    ap.add_argument("--A2", default="WK" * 8 + "G" + "DK" * 6)
    ap.add_argument("--B", default="pDKDKDKTDKDKDKDK")
    ap.add_argument("--wflags", default="nt")
    ap.add_argument("--wqflags", default=None)
    ap.add_argument("--w1flags", default="")
    ap.add_argument("--spin", type=int, default=20000)
    ap.add_argument("--thrA", type=int, default=0)
    ap.add_argument("--thrS", type=int, default=0)
    ap.add_argument("--la", type=int, default=30)
    ap.add_argument("--lamid", type=int, default=36)
    ap.add_argument("--decay", type=int, default=1)
    ap.add_argument("--midloads", type=int, default=1)
    ap.add_argument("--oflags", default="")
    ap.add_argument("--outflags", default="")
    ap.add_argument("--nfast", type=int, default=24)
    ap.add_argument("--rot", type=int, default=1)
    ap.add_argument("--flipb", type=int, default=0)
    ap.add_argument("--midextra", type=int, default=0)
    ap.add_argument("--earlyml", type=int, default=1)
    ap.add_argument("--swapbad", type=int, default=1)
    ap.add_argument("--bar4", type=int, default=1)
    ap.add_argument("--bar5", type=int, default=0)
    ap.add_argument("--touch", type=int, default=0)
    ap.add_argument("--preflags", default="sc1")
    ap.add_argument("--nsets", type=int, default=3)
    ap.add_argument("--stagger", type=int, default=3)
    ap.add_argument("--sleep1", type=int, default=0)
    ap.add_argument("--sleep2", type=int, default=0)
    cfg = ap.parse_args(argv)
    if cfg.lite2:
        cfg.lite = True
    return cfg


if __name__ == "__main__":
    cfg = parse()
    txt, names, nops = build(cfg)
    open(cfg.o, "w").write(txt)
    print("wrote", cfg.o, "nops inserted:", nops, "stamps:", names)
```

```python
import argparse, sys
from asmlib import Gen

NAME = "gated_mix__gqa_block_cached__dense_activation_relu__decode"

WS_EP = 0x0
WS_Q = 0x1000
WS_ML = 0x20000
WS_O = 0x40000
WS_Y = 0x200000
WS_SLOW = 0x400000
WS_DBG = 0x800000
WS_T = 0xFF00000

L_QP = 0
L_HP = L_QP + 2048
L_QB = L_HP + 1024
L_HB = L_QB + 1024
L_MX = L_HB + 128
L_LP = L_MX + 128
L_OB = L_LP + 128
L_ST = L_OB + 128
L_AC = L_ST + 128
L_WO = L_AC + 8192
L_W2 = L_WO + 57344
LDS_BYTES = L_W2 + 28672 + 128

sX, sWQ, sW1, sK, sV, sWO, sW2, sG, sWS, sOUT = 28, 32, 36, 40, 44, 48, 52, 56, 60, 64
sHKV, sS, sB, sW, sTag, sP, sGrp = 68, 69, 70, 71, 72, 73, 74
sT0, sT1, sT2, sT3, sT4 = 75, 76, 77, 78, 79
sKoff, sVoff, sC, sSelLo, sSelHi, sCnt = 80, 81, 82, 83, 84, 85
sG_, sOMG = 94, 95
sDmaG, sDmaL = 96, 97
sKeySl = 90


def srd(b):
    return f"s[{b}:{b+3}]"


def vr(b, n=4):
    return f"v[{b}:{b+n-1}]"


def ar(b, n=4):
    return f"a[{b}:{b+n-1}]"


vTid, vL, vKoff, vVoff = 0, 1, 2, 3
vPM = 4
vQ = 8
vAcc0, vAcc1, vLacc, vOnes = 16, 20, 24, 28
vS = 32
vD = 64
vA = 80
vWq, vW1, vX, vL16, vM, vT0, vT1, vStamp = 88, 89, 90, 91, 92, 93, 94, 95
vP = 96
vWQd, vW1d, vXd, vMQ, vMH, vXdup, vAq, vAh, vDq, vDh, vGx, vGw = 128, 184, 212, 220, 224, 226, 228, 236, 240, 244, 248, 252
aWO, aW2 = 128, 208
NT = 10


HEADER = """;
;            8 workgroups of the (b, hkv) group through tagged granules in d_ws
; Hand-off granule: 16 B = (data, tag, data, tag); tag = epoch word of the batch row in d_ws + constant, and the
"""


def build(cfg):
    g = Gen()
    g.virtual = set()
    dbg = cfg.debug
    wf = cfg.wflags
    nstamp = [0]
    stamp_names = []

    hd = cfg.hdebug
    hd_sel = cfg.hdebug_sel.split(",") if cfg.hdebug_sel else []

    probe = cfg.probe.split(":") if cfg.probe else None

    def stamp(name):
        if probe and name == probe[0]:
            g(f"s_memrealtime s[98:99]\ns_waitcnt lgkmcnt(0)\ns_sub_u32 s98, s98, s100\ns_cmp_gt_u32 s98, {probe[1]}\ns_cselect_b32 s101, 1, 0")
        if hd and name in hd_sel:
            k = 2 + hd_sel.index(name)
            g(f"s_memrealtime s[98:99]\ns_waitcnt lgkmcnt(0)\nv_writelane_b32 v{vStamp}, s98, {k}")
        if not dbg:
            return
        g(f"s_memrealtime s[98:99]\ns_waitcnt lgkmcnt(0)\nv_writelane_b32 v{vStamp}, s98, {nstamp[0]}")
        stamp_names.append(name)
        nstamp[0] += 1

    def vstamp(name, sreg):
        if not dbg:
            return
        g(f"v_writelane_b32 v{vStamp}, s{sreg}, {nstamp[0]}")
        stamp_names.append(name)
        nstamp[0] += 1

    def poll_masked(name, base, loads, sleep, bound=None, timeout=None, toggle=()):
        n = len(loads)
        pend = [28 + 2 * i for i in range(n)]
        tv = [vS + 24 + i for i in range(n)]
        for i, (va, so, imm) in enumerate(loads):
            g.vmem(f"buffer_load_dwordx4 {vr(base+4*i)}, v{va}, {srd(sWS)}, s{so} offen offset:{imm} sc1", counted=False)
        g(f"s_mov_b32 s{sCnt}, {bound or cfg.spin}")
        if dbg:
            g(f"s_mov_b32 s59, {32 if name.startswith('h1') else 46}")
        g.label(f"L_{name}_loop")
        g("s_waitcnt vmcnt(0)")
        if dbg:
            g(f"s_memrealtime s[98:99]\ns_waitcnt lgkmcnt(0)\ns_mov_b32 m0, s59\ns_nop 3\nv_writelane_b32 v{vStamp}, s98, m0\ns_add_u32 s59, s59, 1\ns_min_u32 s59, s59, {45 if name.startswith('h1') else 60}")
        for i in range(n):
            g(f"v_bitop3_b32 v{tv[i]}, v{base+4*i+1}, v{base+4*i+3}, s{sTag} bitop3:0x7e")
        g(f"v_or3_b32 v{vT0}, v{tv[0]}, v{tv[1]}, v{tv[2]}")
        k = 3
        while k < n:
            if k + 1 < n:
                g(f"v_or3_b32 v{vT0}, v{vT0}, v{tv[k]}, v{tv[k+1]}")
                k += 2
            else:
                g(f"v_or_b32 v{vT0}, v{vT0}, v{tv[k]}")
                k += 1
        g(f"v_cmp_ne_u32 vcc, 0, v{vT0}")
        g("s_cmp_eq_u64 vcc, 0")
        g(f"s_cbranch_scc1 L_{name}_done")
        if name[1] in cfg.ablate:
            g(f"s_branch L_{name}_done")
        for i in range(n):
            g(f"v_cmp_ne_u32 s[{pend[i]}:{pend[i]+1}], 0, v{tv[i]}")
        g(f"s_sub_u32 s{sCnt}, s{sCnt}, 1")
        g(f"s_cbranch_scc1 {timeout or ('L_' + name + '_done')}")
        if sleep:
            g(f"s_sleep {sleep}")
        for r in toggle:
            g(f"s_xor_b32 s{r}, s{r}, {WS_SLOW}")
        for i, (va, so, imm) in enumerate(loads):
            g(f"s_mov_b64 exec, s[{pend[i]}:{pend[i]+1}]")
            g(f"s_cbranch_execz L_{name}_skip{i}")
            g.vmem(f"buffer_load_dwordx4 {vr(base+4*i)}, v{va}, {srd(sWS)}, s{so} offen offset:{imm} sc1", counted=False)
            g.label(f"L_{name}_skip{i}")
        g("s_mov_b64 exec, -1")
        g(f"s_branch L_{name}_loop")
        g.label(f"L_{name}_done")

    g("s_cmp_ge_u32 s2, 256")
    g("s_cbranch_scc1 L_exit")
    g("s_load_dwordx16 s[4:19], s[0:1], 0")
    g("s_load_dwordx8 s[20:27], s[0:1], 64")
    if dbg or cfg.hdebug or cfg.probe or cfg.lite:
        g(f"v_mov_b32 v{vStamp}, 0")
        g("s_memrealtime s[100:101]")
        if cfg.probe == "slow:0":
            g("s_waitcnt lgkmcnt(0)\ns_mov_b32 s101, 0")
    g(f"""
    v_lshrrev_b32 v{vT0}, 6, v{vTid}
    v_and_b32 v{vL}, 63, v{vTid}
    s_and_b32 s{sHKV}, s2, 7
    v_readfirstlane_b32 s{sW}, v{vT0}
    s_lshr_b32 s{sT0}, s2, 3
    v_bfe_u32 v{vP+2}, v{vL}, 2, 2
    {("s_lshr_b32 s%d, s%d, 2" % (sS, sT0)) if cfg.lateidle else ("s_and_b32 s%d, s%d, 7" % (sS, sT0))}
    v_lshrrev_b32 v{vP+3}, 4, v{vL}
    {("s_and_b32 s%d, s%d, 3" % (sB, sT0)) if cfg.lateidle else ("s_lshr_b32 s%d, s%d, 3" % (sB, sT0))}
    {"s_xor_b32 s%d, s%d, 3" % (sB, sB) if cfg.flipb else ""}
    v_and_b32 v{vP+4}, 3, v{vL}
    s_lshl_b32 s{sGrp}, s{sB}, 3
    v_lshlrev_b32 v{vKoff}, 9, v{vP+2}
    s_add_u32 s{sGrp}, s{sGrp}, s{sHKV}
    v_lshl_add_u32 v{vKoff}, v{vP+3}, 6, v{vKoff}
    s_lshl_b32 s{sT2}, s{sW}, 11
    v_lshl_add_u32 v{vKoff}, v{vP+4}, 4, v{vKoff}
    s_lshl_b32 s{sT3}, s{sGrp}, 21
    v_add_u32 v{vKoff}, s{sT2}, v{vKoff}
    s_lshl_b32 s{sT1}, s{sS}, 18
    s_add_u32 s{sT3}, s{sT3}, s{sT1}
    """)

    def late_prologue():
        if cfg.lateidle:
            g.comment("role index: the last-dispatched split of a head (physical 7) gets the role without dense-branch work")
            g(f"""
            s_mov_b32 s{sKeySl}, s{sS}
            s_lshr_b32 s{sT1}, s10, 7
            s_sub_u32 s{sT1}, 4, s{sT1}
            s_add_u32 s{sS}, s{sS}, s{sT1}
            s_and_b32 s{sS}, s{sS}, 7
            """)
        g(f"""
        s_lshl_b32 s{sP}, s{sHKV}, 3
        s_add_u32 s{sP}, s{sP}, s{sS}
        v_lshrrev_b32 v{vT1}, 3, v{vL}
        v_and_b32 v{vP}, 7, v{vL}
        v_lshlrev_b32 v{vL16}, 4, v{vL}
        """)
        g(f"""
        v_mul_u32_u24 v{vP+1}, 14, v{vT1}
        s_mul_i32 s{sT1}, s{sW}, 112
        v_add_u32 v{vP+1}, s{sT1}, v{vP+1}
        v_lshlrev_b32 v{vX}, 1, v{vP+1}
        v_lshlrev_b32 v{vWq}, 13, v{vP+1}
        v_lshl_add_u32 v{vWq}, v{vP}, 4, v{vWq}
        v_mul_u32_u24 v{vW1}, 3584, v{vP+1}
        v_lshl_add_u32 v{vW1}, v{vP}, 3, v{vW1}
        v_and_b32 v{vP+5}, 15, v{vL}
        s_lshl_b32 s{sT2}, s{sW}, 11
        v_lshlrev_b32 v{vVoff}, 9, v{vP+3}
        v_lshl_add_u32 v{vVoff}, v{vP+5}, 4, v{vVoff}
        v_add_u32 v{vVoff}, s{sT2}, v{vVoff}
        """)
    g("s_waitcnt lgkmcnt(0)")
    if dbg:
        g(f"v_writelane_b32 v{vStamp}, s100, 63")

    def mk(dst, ptr, off_sgpr, size):
        if off_sgpr is None:
            g(f"s_mov_b32 s{dst}, s{ptr}\ns_mov_b32 s{dst+1}, s{ptr+1}")
        else:
            g(f"s_add_u32 s{dst}, s{ptr}, s{off_sgpr}\ns_addc_u32 s{dst+1}, s{ptr+1}, 0")
        if size is not None:
            g(f"s_mov_b32 s{dst+2}, {size}")
        g(f"s_mov_b32 s{dst+3}, 0x20000")

    mk(sK, 6, sT3, 262144)

    late_desc = []
    def desc_x():
        g(f"s_mul_i32 s{sT1}, s{sB}, 896")
        mk(sX, 4, sT1, 896)
    def desc_wq():
        g(f"s_lshl_b32 s{sT1}, s{sP}, 7")
        mk(sWQ, 10, sT1, None)
        g(f"s_sub_u32 s{sWQ+2}, 3670016, s{sT1}")
    def desc_v():
        g(f"s_lshl_b32 s{sT1}, s{sGrp}, 21\ns_lshl_b32 s{sT2}, s{sKeySl if cfg.lateidle else sS}, 18\ns_add_u32 s{sT1}, s{sT1}, s{sT2}")
        mk(sV, 8, sT1, 262144)
    def desc_w1():
        g.comment("seven of the eight splits of a head take a slice of hidden units; the one without is the split whose")
        if cfg.swapbad:
            g(f"s_lshr_b32 s{sT0}, s10, 7\ns_add_u32 s{sT0}, s{sT0}, s{sS}\ns_sub_u32 s{sT0}, s{sT0}, 4\ns_and_b32 s{sT2}, s{sT0}, 7")
        else:
            g(f"s_mov_b32 s{sT2}, s{sS}")
        g(f"s_mul_i32 s{sT0}, s{sHKV}, 7\ns_add_u32 s{sT0}, s{sT0}, s{sT2}")
        g(f"s_lshl_b32 s{sT1}, s{sT0}, 6")
        mk(sW1, 16, sT1, None)
        g(f"s_sub_u32 s{sW1+2}, 1605632, s{sT1}")
        g(f"s_mul_i32 s{sT1}, s{sT0}, 28672")
        mk(sW2, 18, sT1, 28672)
        g(f"s_cmp_eq_u32 s{sT2}, 7\ns_cselect_b32 s{sW1+2}, 0, s{sW1+2}\ns_cselect_b32 s{sW2+2}, 0, s{sW2+2}")
        mk(sG, 20, None, 896)
    def desc_wo():
        g(f"s_mul_i32 s{sT1}, s{sP}, 57344")
        mk(sWO, 12, sT1, 57344)

    kl = [0]

    thr = [cfg.thrA]

    def throttle():
        if thr[0] and len(g.vm) >= thr[0]:
            g(f"s_waitcnt vmcnt({thr[0]-1})")

    def kv_load():
        k = kl[0]
        if k >= 128:
            return
        kl[0] += 1
        throttle()
        isv = k >= 64
        kk = k - 64 if isv else k
        i, t = kk >> 1, kk & 1
        so = sVoff if isv else sKoff
        if kk % 2 == 0:
            if kk == 0:
                if cfg.rot:
                    g.comment("every 2 MB page starts its walk at its own phase (head*4 + batch) * 8 KB and wraps in the slice")
                    g(f"s_lshl_b32 s{so}, s{sHKV}, 2\ns_add_u32 s{so}, s{so}, s{sB}\ns_lshl_b32 s{so}, s{so}, 13")
                else:
                    g(f"s_mov_b32 s{so}, 0")
            else:
                g(f"s_add_u32 s{so}, s{so}, 8192")
                if cfg.rot:
                    g(f"s_and_b32 s{so}, s{so}, 0x3ffff")
        imm = t * 256
        if not isv:
            dst, va, sr = ar(4 * kk), vKoff, sK
        else:
            dst = vr(128 + 4 * kk) if kk < 32 else ar(4 * (kk - 32))
            va, sr = vVoff, sV
        fl = cfg.vflags if isv else cfg.kflags
        g.vmem(f"buffer_load_dwordx4 {dst}, v{va}, {srd(sr)}, s{so} offen offset:{imm} {fl}", ("kv", k))

    qi, wi = [0], [0]
    n_after_poll = [None]
    xops = [("dwo", k) for k in range(14)] + [("dw2", k) for k in range(7)]
    xi = [0]
    sWqOff, sW1Off, sDb = 14, 15, 3

    def x_op():
        if xi[0] >= len(xops):
            return
        kind, i = xops[xi[0]]
        xi[0] += 1
        throttle()
        if "D" in cfg.ablate:
            if kind == "dwo" and i == 0:
                desc_wo()
            g.virtual.add("dma")
            return
        if kind == "dwo":
            if i == 0:
                desc_wo()
                g(f"s_mul_i32 s{sDmaG}, s{sW}, 14336")
            if i % 4 == 0:
                g(f"s_add_u32 s{sDb}, s{sDmaG}, {i*1024}\ns_add_u32 m0, s{sDb}, {L_WO}")
            g.vmem(f"buffer_load_dwordx4 v{vL16}, {srd(sWO)}, s{sDb} offen offset:{(i%4)*1024} {wf} lds", "dma")
        else:
            if i == 0:
                g(f"s_mul_i32 s{sDmaL}, s{sW}, 7168")
            if i % 4 == 0:
                g(f"s_add_u32 s{sDb}, s{sDmaL}, {i*1024}\ns_add_u32 m0, s{sDb}, {L_W2}")
            g.vmem(f"buffer_load_dwordx4 v{vL16}, {srd(sW2)}, s{sDb} offen offset:{(i%4)*1024} {wf} lds", "dma")

    def emit_poll():
        g.comment("wave 0 polls the group's q granules, queued behind the loads issued so far")
        g(f"s_cmp_lg_u32 s{sW}, 0\ns_cbranch_scc1 L_nopoll")
        g(f"s_lshl_b32 s{sT4}, s{sGrp}, 11\ns_add_u32 s{sT4}, s{sT4}, {WS_Q}")
        g.vmem(f"buffer_load_dwordx4 {vr(vP)}, v{vL16}, {srd(sWS)}, s{sT4} offen sc1", counted=False)
        g.vmem(f"buffer_load_dwordx4 {vr(vP+4)}, v{vL16}, {srd(sWS)}, s{sT4} offen offset:1024 sc1", counted=False)
        g.label("L_nopoll")
        n_after_poll[0] = len(g.vm)

    def issue(sched):
        for op in sched:
            if op == "K":
                kv_load()
            elif op == "X":
                late_prologue()
                desc_x()
                g.vmem(f"buffer_load_dwordx4 {vr(vXd)}, v{vX}, {srd(sX)}, 0 offen", "x")
                g.vmem(f"buffer_load_dwordx3 v[{vXd+4}:{vXd+6}], v{vX}, {srd(sX)}, 0 offen offset:16", "x")
            elif op == "Q":
                i = qi[0]; qi[0] += 1
                throttle()
                if i == 0:
                    desc_wq()
                    g(f"s_mov_b32 s{sWqOff}, 0")
                    if "L" in cfg.ablate:
                        g(f"s_mul_i32 s{sT1}, s{sP}, 57344\ns_add_u32 s{sWQ}, s10, s{sT1}\ns_addc_u32 s{sWQ+1}, s11, 0\ns_mov_b32 s{sWQ+2}, 57344")
                        g(f"s_mul_i32 s{sT1}, s{sW}, 14336\nv_add_u32 v{vWq}, s{sT1}, v{vL16}")
                else:
                    g(f"s_add_u32 s{sWqOff}, s{sWqOff}, {1024 if 'L' in cfg.ablate else 8192}")
                g.vmem(f"buffer_load_dwordx4 {vr(vWQd+4*i)}, v{vWq}, {srd(sWQ)}, s{sWqOff} offen {cfg.wqflags if cfg.wqflags is not None else wf}", ("wq", i))
            elif op == "W" and "W" in cfg.ablate:
                i = wi[0]; wi[0] += 1
                if i == 0:
                    desc_w1()
                g.virtual.add(("w1", i))
            elif op == "W":
                i = wi[0]; wi[0] += 1
                throttle()
                if i == 0:
                    desc_w1()
                    g(f"s_mov_b32 s{sW1Off}, 0")
                else:
                    g(f"s_add_u32 s{sW1Off}, s{sW1Off}, 3584")
                g.vmem(f"buffer_load_dwordx2 v[{vW1d+2*i}:{vW1d+2*i+1}], v{vW1}, {srd(sW1)}, s{sW1Off} offen {cfg.w1flags if cfg.w1flags is not None else wf}", ("w1", i))
            elif op == "G":
                g.vmem(f"buffer_load_dwordx4 {vr(vGx)}, v{vL16}, {srd(sX)}, 0 offen", "gate")
                g.vmem(f"buffer_load_dwordx4 {vr(vGw)}, v{vL16}, {srd(sG)}, 0 offen", "gate")
            elif op == "D":
                x_op()
            elif op in "TU":
                g.comment("read the tail's inbox lines once, so that they are cache-resident when they get written")
                if op == "T":
                    g(f"""
                    s_lshl_b32 s{sT0}, s{sGrp}, 15
                    s_lshl_b32 s{sT1}, s{sS}, 12
                    s_add_u32 s{sT0}, s{sT0}, s{sT1}
                    s_lshl_b32 s{sT1}, s{sW}, 10
                    s_add_u32 s{sT0}, s{sT0}, s{sT1}
                    s_add_u32 s{sT0}, s{sT0}, {WS_O}
                    """)
                    throttle()
                    g.vmem(f"buffer_load_dwordx4 {vr(vA)}, v{vL16}, {srd(sWS)}, s{sT0} offen {cfg.preflags}", "pre")
                    g(f"""
                    s_lshl_b32 s{sT0}, s{sGrp}, 10
                    s_lshl_b32 s{sT1}, s{sW}, 8
                    s_add_u32 s{sT0}, s{sT0}, s{sT1}
                    s_add_u32 s{sT0}, s{sT0}, {WS_ML}
                    v_lshrrev_b32 v{vT1}, 5, v{vL}
                    v_lshlrev_b32 v{vT1}, 7, v{vT1}
                    """)
                    throttle()
                    g.vmem(f"buffer_load_dword v{vA+4}, v{vT1}, {srd(sWS)}, s{sT0} offen {cfg.preflags}", "pre")
                g(f"""
                s_mul_i32 s{sT0}, s{sB}, {56*4096}
                s_lshl_b32 s{sT1}, s{sP}, 12
                s_add_u32 s{sT0}, s{sT0}, s{sT1}
                s_lshl_b32 s{sT1}, s{sW}, 10
                s_add_u32 s{sT0}, s{sT0}, s{sT1}
                s_add_u32 s{sT0}, s{sT0}, {WS_Y}
                """)
                throttle()
                g.vmem(f"buffer_load_dwordx4 {vr(vA)}, v{vL16}, {srd(sWS)}, s{sT0} offen {cfg.preflags}", "pre")
            elif op == "p":
                emit_poll()
            else:
                raise ValueError(op)

    issue(cfg.A1)
    desc_v()
    assert qi[0] == 14
    stamp("A_issued")

    g(f"s_lshl_b32 s{sT0}, s{sB}, 8")
    g(f"s_load_dword s{sTag}, s[26:27], s{sT0}")
    mk(sWS, 26, None, 0x10000000 if (dbg or cfg.lite) else 0x600000)
    mk(sOUT, 22, None, 3584)
    g(f"""
    s_mov_b32 s{sC}, 0x3db8aa3b
    s_mov_b32 s{sSelLo}, 0x01000100
    s_mov_b32 s{sSelHi}, 0x03020302
    """)
    half = vT0
    g(f"""
    v_and_b32 v{half}, 1, v{vL}
    v_lshlrev_b32 v{half}, 4, v{half}
    v_mov_b32 v{vT1}, 0xffff
    v_lshlrev_b32 v{half}, v{half}, v{vT1}
    v_bfe_u32 v{vP}, v{vL}, 1, 2
    v_bfe_u32 v{vP+1}, v{vL}, 1, 1
    v_bfe_u32 v{vP+2}, v{vL}, 3, 1
    v_lshl_add_u32 v{vP+2}, v{vP+2}, 1, v{vP+1}
    """)
    for r in range(4):
        g(f"v_cmp_eq_u32 s[{86+2*(r&3)}:{87+2*(r&3)}], {r}, v{vP}")
    for r in range(4):
        g(f"v_cndmask_b32 v{vMQ+r}, 0, v{half}, s[{86+2*r}:{87+2*r}]")
    for r in range(2):
        g(f"v_cmp_eq_u32 s[{86+2*r}:{87+2*r}], {r}, v{vP+1}")
    for r in range(2):
        g(f"v_cndmask_b32 v{vMH+r}, 0, v{half}, s[{86+2*r}:{87+2*r}]")
    for r in range(4):
        g(f"v_cmp_eq_u32 s[{86+2*r}:{87+2*r}], {r}, v{vP+2}")
    for r in range(4):
        g(f"v_cndmask_b32 v{vPM+r}, 0, v{half}, s[{86+2*r}:{87+2*r}]")
    g("s_waitcnt lgkmcnt(0)")
    g(f"s_add_u32 s{sTag}, s{sTag}, 0x9e3779b9")

    def xdup(i):
        sel = sSelHi if i & 1 else sSelLo
        r = vXd + (i >> 1)
        g(f"v_perm_b32 v{vXdup}, v{r}, v{r}, s{sel}")

    def prep_q(i):
        xdup(i)
        for r in range(4):
            g(f"v_and_b32 v{vAq + 4*(i&1) + r}, v{vXdup}, v{vMQ+r}")

    g.wait_vm("x")
    prep_q(0)
    for i in range(14):
        if i < 13:
            prep_q(i + 1)
        g.wait_vm(("wq", i))
        c = "0" if i == 0 else vr(vDq)
        g(f"v_mfma_f32_16x16x32_bf16 {vr(vDq)}, {vr(vAq + 4*(i&1))}, {vr(vWQd + 4*i)}, {c}")
    stamp("wq_landed")
    g(f"""
    v_lshrrev_b32 v{vT0}, 5, v{vL}
    s_lshl_b32 s{sT0}, s{sW}, 1
    v_add_u32 v{vT0}, s{sT0}, v{vT0}
    v_lshlrev_b32 v{vT0}, 8, v{vT0}
    v_and_b32 v{vT1}, 7, v{vL}
    v_lshl_add_u32 v{vT0}, v{vT1}, 5, v{vT0}
    v_bfe_u32 v{vT1}, v{vL}, 4, 1
    v_lshl_add_u32 v{vT0}, v{vT1}, 4, v{vT0}
    s_mov_b32 exec_lo, 0x00ff00ff
    s_mov_b32 exec_hi, 0xff00ff00
    ds_write_b128 v{vT0}, {vr(vDq)} offset:{L_QP}
    s_mov_b64 exec, -1
    s_waitcnt lgkmcnt(0)
    s_barrier
    """)
    g(f"s_cmp_lg_u32 s{sW}, 0\ns_cbranch_scc1 L_qpub_done")
    g(f"s_mov_b64 exec, 0xffff")
    for k in range(8):
        g(f"ds_read_b128 {vr(vP+4*k)}, v{vL16} offset:{L_QP + 256*k}")
    g(f"s_lshl_b32 s{sT0}, s{sGrp}, 11\ns_lshl_b32 s{sT1}, s{sS}, 8\ns_add_u32 s{sT0}, s{sT0}, s{sT1}\ns_add_u32 s{sT0}, s{sT0}, {WS_Q}")
    g(f"v_mov_b32 v{vD+1}, s{sTag}\nv_mov_b32 v{vD+3}, s{sTag}")
    g("s_waitcnt lgkmcnt(0)")
    for k in (1, 3, 5, 7):
        for j in range(4):
            g(f"v_add_f32 v{vP+4*(k-1)+j}, v{vP+4*(k-1)+j}, v{vP+4*k+j}")
    for k in (2, 6):
        for j in range(4):
            g(f"v_add_f32 v{vP+4*(k-2)+j}, v{vP+4*(k-2)+j}, v{vP+4*k+j}")
    for j in range(4):
        g(f"v_add_f32 v{vP+j}, v{vP+j}, v{vP+16+j}")
    g(f"v_cvt_pk_bf16_f32 v{vD}, v{vP}, v{vP+1}\nv_cvt_pk_bf16_f32 v{vD+2}, v{vP+2}, v{vP+3}")
    g.vmem(f"buffer_store_dwordx4 {vr(vD)}, v{vL16}, {srd(sWS)}, s{sT0} offen sc1", counted=False)
    g("s_mov_b64 exec, -1")
    g.label("L_qpub_done")
    stamp("q_published")

    if cfg.touch:
        g.comment("warm the address translation of the pages that the tail touches first")
        g(f"v_mov_b32 v{vT1}, 0")
        g(f"s_mul_i32 s{sT0}, s{sB}, {56*8192}\ns_add_u32 s{sT0}, s{sT0}, {WS_Y}")
        g.vmem(f"buffer_load_dword v{vD+8}, v{vT1}, {srd(sWS)}, s{sT0} offen sc1", "touch")
        g(f"s_add_u32 s{sT0}, s{sT0}, {56*8192-4}")
        g.vmem(f"buffer_load_dword v{vD+9}, v{vT1}, {srd(sWS)}, s{sT0} offen sc1", "touch")
        g.vmem(f"buffer_load_dword v{vD+10}, v{vT1}, {srd(sOUT)}, 0 offen sc1", "touch")
    issue(cfg.A2)
    assert wi[0] == 14
    def prep_h(i):
        xdup(i)
        for r in range(2):
            g(f"v_and_b32 v{vAh + 2*(i&1) + r}, v{vXdup}, v{vMH+r}")

    prep_h(0)
    for i in range(14):
        if i < 13:
            prep_h(i + 1)
        if i in (0, 6, 13):
            g.wait_vm(("w1", {0: 5, 6: 12, 13: 13}[i]))
        c = "0" if i == 0 else vr(vDh)
        g(f"v_mfma_f32_16x16x16_bf16 {vr(vDh)}, v[{vAh+2*(i&1)}:{vAh+2*(i&1)+1}], v[{vW1d+2*i}:{vW1d+2*i+1}], {c}")
    g(f"""
    v_lshrrev_b32 v{vT0}, 5, v{vL}
    s_lshl_b32 s{sT0}, s{sW}, 1
    v_add_u32 v{vT0}, s{sT0}, v{vT0}
    v_lshlrev_b32 v{vT0}, 7, v{vT0}
    v_and_b32 v{vT1}, 7, v{vL}
    v_lshl_add_u32 v{vT0}, v{vT1}, 4, v{vT0}
    s_mov_b32 exec_lo, 0x000000ff
    s_mov_b32 exec_hi, 0x0000ff00
    ds_write_b128 v{vT0}, {vr(vDh)} offset:{L_HP}
    s_mov_b64 exec, -1
    """)

    g.wait_vm("gate")
    acc = vP + 8
    for r in range(4):
        a, b2, c2, d2 = vP + 9, vP + 10, vP + 11, vP + 12
        g(f"""
        v_lshlrev_b32 v{a}, 16, v{vGx+r}
        v_and_b32 v{b2}, 0xffff0000, v{vGx+r}
        v_lshlrev_b32 v{c2}, 16, v{vGw+r}
        v_and_b32 v{d2}, 0xffff0000, v{vGw+r}
        v_mul_f32 v{a}, v{a}, v{c2}
        v_mul_f32 v{b2}, v{b2}, v{d2}
        v_cvt_pk_bf16_f32 v{a}, v{a}, v{b2}
        v_and_b32 v{b2}, 0xffff0000, v{a}
        v_lshlrev_b32 v{a}, 16, v{a}
        """)
        if r == 0:
            g(f"v_add_f32 v{acc}, v{a}, v{b2}")
        else:
            g(f"v_add_f32 v{acc}, v{acc}, v{a}\nv_add_f32 v{acc}, v{acc}, v{b2}")
    for sh in (8, 4, 2, 1):
        g(f"v_add_f32_dpp v{acc}, v{acc}, v{acc} row_ror:{sh} row_mask:0xf bank_mask:0xf")
    g(f"""
    v_readlane_b32 s{sT0}, v{acc}, 0
    v_readlane_b32 s{sT1}, v{acc}, 16
    v_readlane_b32 s{sT2}, v{acc}, 32
    v_readlane_b32 s{sT3}, v{acc}, 48
    v_mov_b32 v{acc}, s{sT0}
    v_add_f32 v{acc}, s{sT1}, v{acc}
    v_add_f32 v{acc}, s{sT2}, v{acc}
    v_add_f32 v{acc}, s{sT3}, v{acc}
    v_cvt_pk_bf16_f32 v{acc}, v{acc}, v{acc}
    v_and_b32 v{acc}, 0xffff0000, v{acc}
    v_mul_f32 v{acc}, 0xbfb8aa3b, v{acc}
    v_exp_f32 v{acc}, v{acc}
    v_add_f32 v{acc}, 1.0, v{acc}
    v_rcp_f32 v{acc}, v{acc}
    v_cvt_pk_bf16_f32 v{acc}, v{acc}, v{acc}
    v_and_b32 v{acc}, 0xffff0000, v{acc}
    v_sub_f32 v{acc+1}, 1.0, v{acc}
    v_cvt_pk_bf16_f32 v{acc+1}, v{acc+1}, v{acc+1}
    v_and_b32 v{acc+1}, 0xffff0000, v{acc+1}
    v_readfirstlane_b32 s{sG_}, v{acc}
    v_readfirstlane_b32 s{sOMG}, v{acc+1}
    """)

    issue(cfg.B)
    assert n_after_poll[0] is not None
    cfgP = kl[0]
    stamp("B_issued")

    def seq_load():
        if xi[0] < len(xops) and kl[0] < 128:
            for _ in range(cfg.xilv):
                x_op()
        kv_load()

    def advance(consumed, la):
        while kl[0] < min(consumed + la, 128):
            seq_load()

    def la_at(u):
        return max(cfg.la, cfgP - cfg.decay * u)

    thr[0] = cfg.thrS

    g(f"s_cmp_lg_u32 s{sW}, 0\ns_cbranch_scc1 L_qwait_done")
    n = min(len(g.vm) - n_after_poll[0], 63)
    g(f"s_waitcnt vmcnt({n})")
    g(f"s_mov_b32 s{sCnt}, {cfg.spin}")
    g.label("L_qcheck")
    for r in (1, 3, 5, 7):
        g(f"v_cmpx_eq_u32 vcc, s{sTag}, v{vP+r}")
    g("s_cmp_eq_u64 exec, -1")
    g("s_mov_b64 exec, -1")
    g("s_cbranch_scc1 L_qok")
    g(f"s_sub_u32 s{sCnt}, s{sCnt}, 1\ns_cbranch_scc1 L_qok")
    g("s_sleep 2")
    g.vmem(f"buffer_load_dwordx4 {vr(vP)}, v{vL16}, {srd(sWS)}, s{sT4} offen sc1", counted=False)
    g.vmem(f"buffer_load_dwordx4 {vr(vP+4)}, v{vL16}, {srd(sWS)}, s{sT4} offen offset:1024 sc1", counted=False)
    g("s_waitcnt vmcnt(0)")
    g("s_branch L_qcheck")
    g.label("L_qok")
    vstamp("#q_left", sCnt)
    g(f"v_lshlrev_b32 v{vT0}, 3, v{vL}")
    g(f"v_add_u32 v{vT0}, {L_QB}, v{vT0}")
    g(f"ds_write2_b32 v{vT0}, v{vP}, v{vP+2} offset0:0 offset1:1")
    g(f"ds_write2_b32 v{vT0}, v{vP+4}, v{vP+6} offset0:128 offset1:129")
    g.label("L_qwait_done")
    g("s_waitcnt lgkmcnt(0)\ns_barrier")
    stamp("q_ready")

    g(f"""
    v_bfe_u32 v{vT0}, v{vL}, 2, 1
    v_lshlrev_b32 v{vT0}, 9, v{vT0}
    v_lshrrev_b32 v{vT1}, 4, v{vL}
    v_lshl_add_u32 v{vT0}, v{vT1}, 6, v{vT0}
    v_and_b32 v{vT1}, 3, v{vL}
    v_lshl_add_u32 v{vT0}, v{vT1}, 4, v{vT0}
    ds_read_b128 {vr(vQ)}, v{vT0} offset:{L_QB}
    ds_read_b128 {vr(vQ+4)}, v{vT0} offset:{L_QB+256}
    """)
    g(f"s_cmp_lg_u32 s{sW}, 1\ns_cbranch_scc1 L_h_done")
    g("s_mov_b64 exec, 0xff")
    for k in range(8):
        g(f"ds_read_b128 {vr(vP+4*k)}, v{vL16} offset:{L_HP + 128*k}")
    g("s_waitcnt lgkmcnt(0)")
    for k in (1, 3, 5, 7):
        for j in range(4):
            g(f"v_add_f32 v{vP+4*(k-1)+j}, v{vP+4*(k-1)+j}, v{vP+4*k+j}")
    for k in (2, 6):
        for j in range(4):
            g(f"v_add_f32 v{vP+4*(k-2)+j}, v{vP+4*(k-2)+j}, v{vP+4*k+j}")
    for j in range(4):
        g(f"v_add_f32 v{vP+j}, v{vP+j}, v{vP+16+j}")
    for j in range(4):
        g(f"v_max_f32 v{vP+j}, 0, v{vP+j}")
    g(f"""
    v_cvt_pk_bf16_f32 v{vP+4}, v{vP}, v{vP+1}
    v_cvt_pk_bf16_f32 v{vP+5}, v{vP+2}, v{vP+3}
    v_lshlrev_b32 v{vT0}, 3, v{vL}
    ds_write_b64 v{vT0}, v[{vP+4}:{vP+5}] offset:{L_HB}
    s_mov_b64 exec, -1
    """)
    g.label("L_h_done")
    g("s_waitcnt lgkmcnt(0)")

    def qk_reduce(i):
        d = vD + 4 * (i & 3)
        s = vS + i
        g(f"v_mov_b32_dpp v{s}, v{d} quad_perm:[0,0,0,0] row_mask:0xf bank_mask:0xf")
        for c in (1, 2, 3):
            g(f"v_add_f32_dpp v{s}, v{d+c}, v{s} quad_perm:[{c},{c},{c},{c}] row_mask:0xf bank_mask:0xf")
        if cfg.roundqk:
            g(f"v_cvt_pk_bf16_f32 v{s}, v{s}, v{s}\nv_and_b32 v{s}, 0xffff0000, v{s}")
        if i == 0:
            g(f"v_mov_b32 v{vM}, v{s}")
        else:
            g(f"v_max_f32 v{vM}, v{vM}, v{s}")

    for i in range(32):
        g.wait_vm(("kv", 2 * i + 1))
        d = vr(vD + 4 * (i & 3))
        g(f"v_mfma_f32_16x16x32_bf16 {d}, {ar(8*i)}, {vr(vQ)}, 0")
        g(f"v_mfma_f32_16x16x32_bf16 {d}, {ar(8*i+4)}, {vr(vQ+4)}, {d}")
        if i > 0:
            qk_reduce(i - 1)
        advance(2 * i + 2, la_at(i + 1) if i < 31 else max(la_at(32), cfg.lamid))
    qk_reduce(31)
    stamp("qk_done")
    g(f"""
    v_mov_b32 v{vT0}, v{vM}
    v_permlane32_swap_b32 v{vM}, v{vT0}
    v_max_f32 v{vM}, v{vM}, v{vT0}
    v_mov_b32 v{vT0}, v{vM}
    v_permlane16_swap_b32 v{vM}, v{vT0}
    v_max_f32 v{vM}, v{vM}, v{vT0}
    v_bfe_u32 v{vT0}, v{vL}, 2, 1
    v_lshlrev_b32 v{vT1}, 4, v{vT0}
    s_lshl_b32 s{sT0}, s{sW}, 2
    v_add_u32 v{vT0}, s{sT0}, v{vT1}
    s_mov_b64 exec, 0x11
    ds_write_b32 v{vT0}, v{vM} offset:{L_MX}
    s_mov_b64 exec, -1
    """)
    while xi[0] < len(xops):
        x_op()
    g.wait_vm("dma")
    g(f"""
    s_waitcnt lgkmcnt(0)
    s_barrier
    ds_read_b128 {vr(vP)}, v{vT1} offset:{L_MX}
    """)
    for _ in range(cfg.midextra):
        seq_load()
    vTr, vTr2 = vD + 12, vD + 13
    sColB = 12
    g(f"""
    s_cmp_eq_u32 s{sW}, 2
    s_cselect_b32 s{sColB}, 320, 0
    s_cmp_eq_u32 s{sW}, 3
    s_cselect_b32 s{sColB}, 608, s{sColB}
    v_lshrrev_b32 v{vP+4}, 4, v{vL}
    v_bfe_u32 v{vTr}, v{vL}, 2, 2
    v_lshl_add_u32 v{vTr}, v{vP+4}, 3, v{vTr}
    v_mul_u32_u24 v{vTr}, 896, v{vTr}
    v_and_b32 v{vP+6}, 3, v{vL}
    v_lshl_add_u32 v{vTr}, v{vP+6}, 3, v{vTr}
    v_add_u32 v{vTr}, s{sColB}, v{vTr}
    v_lshlrev_b32 v{vP+4}, 4, v{vP+4}
    ds_read_b128 {vr(vA)}, v{vP+4} offset:{L_HB}
    v_add_u32 v{vTr2}, {L_W2}, v{vTr}
    s_waitcnt lgkmcnt(0)
    """)
    for c in range(NT):
        for hf in range(2):
            g(f"ds_read_b64_tr_b16 {ar(aW2 + 4*c + 2*hf, 2)}, v{vTr2} offset:{hf*3584 + c*32}")
    g(f"""
    v_max3_f32 v{vM}, v{vP}, v{vP+1}, v{vP+2}
    v_max_f32 v{vM}, v{vM}, v{vP+3}
    v_mul_f32 v{vM}, s{sC}, v{vM}
    """)
    for i in range(0, 32, 4):
        for j in range(4):
            g(f"v_fma_f32 v{vS+i+j}, v{vS+i+j}, s{sC}, -v{vM}")
        for j in range(4):
            g(f"v_exp_f32 v{vS+i+j}, v{vS+i+j}")
        for j in range(4):
            if i + j < 2:
                g(f"v_mov_b32 v{vLacc+i+j}, v{vS+i+j}")
            else:
                g(f"v_add_f32 v{vLacc+(j&1)}, v{vLacc+(j&1)}, v{vS+i+j}")
        for j in range(4):
            g(f"v_cvt_pk_bf16_f32 v{vS+i+j}, v{vS+i+j}, v{vS+i+j}")
        for _ in range(cfg.midloads):
            seq_load()
    g(f"""
    v_add_f32 v{vLacc}, v{vLacc}, v{vLacc+1}
    v_bfe_u32 v{vT1}, v{vL}, 2, 1
    v_mov_b32 v{vLacc+1}, v{vLacc}
    v_lshlrev_b32 v{vT1}, 4, v{vT1}
    v_permlane32_swap_b32 v{vLacc}, v{vLacc+1}
    s_lshl_b32 s{sT0}, s{sW}, 2
    v_add_f32 v{vLacc}, v{vLacc}, v{vLacc+1}
    v_add_u32 v{vT1}, s{sT0}, v{vT1}
    v_mov_b32 v{vLacc+1}, v{vLacc}
    v_permlane16_swap_b32 v{vLacc}, v{vLacc+1}
    v_add_f32 v{vLacc}, v{vLacc}, v{vLacc+1}
    s_mov_b64 exec, 0x11
    ds_write_b32 v{vT1}, v{vLacc} offset:{L_LP}
    s_mov_b64 exec, -1
    """)
    g("s_waitcnt lgkmcnt(0)")
    if cfg.earlyml:
        g("s_barrier")
    for _ in range(cfg.midextra):
        seq_load()
    for t in range(2):
        for c in range(NT):
            for hf in range(2):
                g(f"ds_read_b64_tr_b16 {ar(aWO + (t*NT+c)*4 + 2*hf, 2)}, v{vTr} offset:{L_WO + t*28672 + hf*3584 + c*32}")
    g(f"""
    s_mov_b32 s86, 0xffff0000
    s_mov_b32 s87, 0xffff0000
    s_mov_b32 s88, 0
    s_mov_b32 s89, -1
    """)
    vG0, vG1, vG2 = vD, vD + 4, vD + 8
    for c in range(8):
        g(f"v_mfma_f32_16x16x32_bf16 {vr(vP+4*c)}, {vr(vA)}, {ar(aW2+4*c)}, 0")
    vYB = vTr2 + 1
    for G in (vG0, vG1, vG2):
        g(f"v_mov_b32 v{G+1}, s{sTag}\nv_mov_b32 v{G+3}, s{sTag}")
    g(f"""
    v_cndmask_b32 v{vT0}, v{vP}, v{vP+4}, s[86:87]
    v_cndmask_b32 v{vT1}, v{vP+8}, v{vP+12}, s[86:87]
    v_cndmask_b32 v{vYB}, v{vT0}, v{vT1}, s[88:89]
    v_cndmask_b32 v{vT0}, v{vP+16}, v{vP+20}, s[86:87]
    v_cndmask_b32 v{vT1}, v{vP+24}, v{vP+28}, s[86:87]
    v_cndmask_b32 v{vYB+1}, v{vT0}, v{vT1}, s[88:89]
    """)
    for c in (8, 9):
        g(f"v_mfma_f32_16x16x32_bf16 {vr(vP+4*(c-8))}, {vr(vA)}, {ar(aW2+4*c)}, 0")
    vYB2 = vQ + 7
    g(f"v_mul_f32 v{vYB}, s{sOMG}, v{vYB}\nv_mul_f32 v{vYB+1}, s{sOMG}, v{vYB+1}")
    g(f"v_cndmask_b32 v{vYB2}, v{vP}, v{vP+4}, s[86:87]")
    g(f"v_mul_f32 v{vYB2}, s{sOMG}, v{vYB2}")
    if cfg.earlyml:
        g.comment("wave 2 publishes the fast copy of (max, sum) per head now; the tail only has to carry the o values")
        g(f"s_cmp_lg_u32 s{sW}, 2\ns_cbranch_scc1 L_ml_done")
        vE = vP + 24
        g(f"""
        v_bfe_u32 v{vT1}, v{vL}, 2, 1
        v_lshlrev_b32 v{vT1}, 4, v{vT1}
        s_mov_b64 exec, 0x11
        ds_read_b128 {vr(vP+12)}, v{vT1} offset:{L_LP}
        s_lshl_b32 s{sT0}, s{sGrp}, 10
        s_lshl_b32 s{sT1}, s{sS}, 7
        s_add_u32 s{sT0}, s{sT0}, s{sT1}
        s_add_u32 s{sT0}, s{sT0}, {WS_ML}
        v_mov_b32 v{vE}, v{vM}
        v_mov_b32 v{vE+1}, s{sTag}
        v_mov_b32 v{vE+3}, s{sTag}
        s_waitcnt lgkmcnt(0)
        v_add_f32 v{vP+12}, v{vP+12}, v{vP+13}
        v_add_f32 v{vP+14}, v{vP+14}, v{vP+15}
        v_add_f32 v{vE+2}, v{vP+12}, v{vP+14}
        """)
        g.vmem(f"buffer_store_dwordx4 {vr(vE)}, v{vT1}, {srd(sWS)}, s{sT0} offen {cfg.oflags}", counted=False)
        g("s_mov_b64 exec, -1")
        g.label("L_ml_done")
    stamp("mid_done")

    for _ in range(cfg.midextra):
        seq_load()
    vAc, vLp, vRd, vOad, vY0, vY1, vY2 = vQ, vQ + 1, vQ + 2, vQ + 3, vQ + 4, vQ + 5, vQ + 6
    vObRd, vObWr, vMlRd, vMlWr = vWq, vW1, vX, vKoff
    sOst, sOld, sMlSt, sMlLd, sYst, sYld, sYld2, sOutOff, sOst2 = 4, 5, 6, 7, 8, 9, 10, 11, 13
    g(f"""
    v_lshrrev_b32 v{vT0}, 4, v{vL}
    v_and_b32 v{vT1}, 1, v{vT0}
    s_lshl_b32 s{sT0}, s{sW}, 11
    v_lshlrev_b32 v{vAc}, 10, v{vT1}
    v_add_u32 v{vAc}, s{sT0}, v{vAc}
    v_lshrrev_b32 v{vT0}, 1, v{vT0}
    v_lshl_add_u32 v{vAc}, v{vT0}, 4, v{vAc}
    v_and_b32 v{vT0}, 15, v{vL}
    v_lshl_add_u32 v{vAc}, v{vT0}, 5, v{vAc}
    """)
    g(f"""
    s_cmp_eq_u32 s{sW}, 1
    s_cselect_b32 s{sT0}, 0, s{sW}
    s_lshl_b32 s{sT1}, s{sT0}, 9
    v_lshlrev_b32 v{vRd}, 3, v{vL}
    v_add_u32 v{vRd}, s{sT1}, v{vRd}
    s_lshl_b32 s{sT1}, s{sT0}, 13
    v_lshrrev_b32 v{vT0}, 5, v{vL}
    v_lshlrev_b32 v{vOad}, 12, v{vT0}
    v_add_u32 v{vOad}, s{sT1}, v{vOad}
    v_and_b32 v{vT0}, 31, v{vL}
    v_lshl_add_u32 v{vOad}, v{vT0}, 4, v{vOad}
    """)
    g(f"""
    s_lshr_b32 s{sT0}, s{sColB}, 4
    v_lshrrev_b32 v{vY0}, 3, v{vL}
    v_add_u32 v{vY0}, s{sT0}, v{vY0}
    v_lshlrev_b32 v{vY0}, 12, v{vY0}
    v_bfe_u32 v{vY1}, v{vL}, 1, 2
    v_lshl_add_u32 v{vY0}, v{vY1}, 4, v{vY0}
    v_add_u32 v{vY1}, 32768, v{vY0}
    v_add_u32 v{vY2}, 65536, v{vY0}
    v_lshrrev_b32 v{vObRd}, 4, v{vL}
    v_lshlrev_b32 v{vObRd}, 4, v{vObRd}
    v_and_b32 v{vObWr}, 31, v{vL}
    v_lshlrev_b32 v{vObWr}, 2, v{vObWr}
    v_lshrrev_b32 v{vMlRd}, 5, v{vL}
    v_lshlrev_b32 v{vMlRd}, 7, v{vMlRd}
    v_bfe_u32 v{vMlWr}, v{vL}, 2, 1
    v_lshlrev_b32 v{vMlWr}, 4, v{vMlWr}
    s_lshl_b32 s{sOst}, s{sGrp}, 15
    s_lshl_b32 s{sT1}, s{sS}, 9
    s_add_u32 s{sOld}, s{sOst}, {WS_O}
    s_add_u32 s{sOst}, s{sOld}, s{sT1}
    s_add_u32 s{sOst2}, s{sOst}, 8192
    s_lshl_b32 s{sT1}, s{sS}, 12
    s_add_u32 s{sOld}, s{sOld}, s{sT1}
    s_lshl_b32 s{sMlSt}, s{sGrp}, 10
    s_add_u32 s{sMlSt}, s{sMlSt}, {WS_ML}
    s_lshr_b32 s{sT1}, s{sS}, 2
    s_lshl_b32 s{sT1}, s{sT1}, 4
    s_add_u32 s{sMlLd}, s{sMlSt}, s{sT1}
    s_lshl_b32 s{sT1}, s{sS}, 7
    s_add_u32 s{sMlSt}, s{sMlSt}, s{sT1}
    s_mul_i32 s{sYst}, s{sB}, {56*4096}
    s_add_u32 s{sYst}, s{sYst}, {WS_Y}
    s_lshl_b32 s{sT1}, s{sP}, 12
    s_add_u32 s{sYld}, s{sYst}, s{sT1}
    s_lshl_b32 s{sT1}, s{sP}, 6
    s_add_u32 s{sYst}, s{sYst}, s{sT1}
    s_mul_i32 s{sOutOff}, s{sB}, 896
    s_lshl_b32 s{sT1}, s{sP}, 4
    s_add_u32 s{sOutOff}, s{sOutOff}, s{sT1}
    """)

    g("s_mov_b32 s91, 0")
    for _ in range(cfg.midextra):
        seq_load()
    def prep_p(i):
        for r in range(4):
            g(f"v_and_b32 v{vA + 4*(i&1) + r}, v{vS+i}, v{vPM+r}")

    prep_p(0)
    for i in range(32):
        a = vr(vA + 4 * (i & 1))
        if i < 31:
            prep_p(i + 1)
        g.wait_vm(("kv", 64 + 2 * i + 1))
        for t, accr in ((0, vAcc0), (1, vAcc1)):
            kk = 2 * i + t
            src = vr(128 + 4 * kk) if kk < 32 else ar(4 * (kk - 32))
            c = "0" if i == 0 else vr(accr)
            g(f"v_mfma_f32_16x16x32_bf16 {vr(accr)}, {a}, {src}, {c}")
        advance(64 + 2 * i + 2, cfg.la)
    assert kl[0] == 128
    stamp("pv_done")
    if cfg.lite2:
        g("s_memrealtime s[96:97]")
    if "E" in cfg.ablate:
        g("s_branch L_finish")

    g(f"""
    ds_write_b128 v{vAc}, {vr(vAcc0)} offset:{L_AC}
    ds_write_b128 v{vAc}, {vr(vAcc1)} offset:{L_AC+512}
    s_waitcnt lgkmcnt(0)
    s_barrier
    """)
    g(f"s_cmp_eq_u32 s{sW}, 0\ns_cbranch_scc1 L_hop1_poll")

    def o_block(base, ldsoff):
        for w in range(4):
            g(f"ds_read_b64 v[{base+2*w}:{base+2*w+1}], v{vRd} offset:{L_AC + 2048*w + ldsoff}")

    def o_sum(base):
        g(f"""
        v_add_f32 v{base}, v{base}, v{base+2}
        v_add_f32 v{base+1}, v{base+1}, v{base+3}
        v_add_f32 v{base+4}, v{base+4}, v{base+6}
        v_add_f32 v{base+5}, v{base+5}, v{base+7}
        v_add_f32 v{base+8}, v{base}, v{base+4}
        v_add_f32 v{base+10}, v{base+1}, v{base+5}
        """)

    vG = vP + 24
    fast = cfg.oflags
    o_block(vP, 0)
    g(f"v_mov_b32 v{vP+9}, s{sTag}\nv_mov_b32 v{vP+11}, s{sTag}")
    g(f"s_cmp_lg_u32 s{sW}, 1\ns_cbranch_scc1 L_o_single")
    o_block(vP + 12, 512)
    g(f"v_mov_b32 v{vP+21}, s{sTag}\nv_mov_b32 v{vP+23}, s{sTag}")
    g("s_waitcnt lgkmcnt(4)")
    o_sum(vP)
    g.vmem(f"buffer_store_dwordx4 {vr(vP+8)}, v{vOad}, {srd(sWS)}, s{sOst} offen {fast}", counted=False)
    g("s_waitcnt lgkmcnt(0)")
    o_sum(vP + 12)
    g.vmem(f"buffer_store_dwordx4 {vr(vP+20)}, v{vOad}, {srd(sWS)}, s{sOst2} offen {fast}", counted=False)
    g("s_branch L_o_done")
    g.label("L_o_single")
    if not cfg.earlyml:
        g.comment("wave 2 also publishes (max, sum) per head")
        g(f"""
        s_mov_b64 exec, 0x11
        ds_read_b128 {vr(vP+12)}, v{vMlWr} offset:{L_LP}
        v_mov_b32 v{vG}, v{vM}
        v_mov_b32 v{vG+1}, s{sTag}
        v_mov_b32 v{vG+3}, s{sTag}
        s_mov_b64 exec, -1
        s_waitcnt lgkmcnt(1)
        """)
    else:
        g("s_waitcnt lgkmcnt(0)")
    o_sum(vP)
    g.vmem(f"buffer_store_dwordx4 {vr(vP+8)}, v{vOad}, {srd(sWS)}, s{sOst} offen {fast}", counted=False)
    if not cfg.earlyml:
        g(f"s_cmp_lg_u32 s{sW}, 2\ns_cbranch_scc1 L_o_done")
        g(f"""
        s_mov_b64 exec, 0x11
        s_waitcnt lgkmcnt(0)
        v_add_f32 v{vP+12}, v{vP+12}, v{vP+13}
        v_add_f32 v{vP+14}, v{vP+14}, v{vP+15}
        v_add_f32 v{vG+2}, v{vP+12}, v{vP+14}
        """)
        g.vmem(f"buffer_store_dwordx4 {vr(vG)}, v{vMlWr}, {srd(sWS)}, s{sMlSt} offen {fast}", counted=False)
        g("s_mov_b64 exec, -1")
    g.label("L_o_done")
    stamp("o_published")
    g("s_barrier")
    g("s_branch L_hop1_join")

    def slow_copies(tag):
        g(f"s_add_u32 s{sT0}, s{sOst}, {WS_SLOW}")
        g.vmem(f"buffer_store_dwordx4 {vr(vP+8)}, v{vOad}, {srd(sWS)}, s{sT0} offen sc1", counted=False)
        g(f"s_cmp_lg_u32 s{sW}, 1\ns_cbranch_scc1 L_slow1_{tag}")
        g(f"s_add_u32 s{sT0}, s{sOst2}, {WS_SLOW}")
        g.vmem(f"buffer_store_dwordx4 {vr(vP+20)}, v{vOad}, {srd(sWS)}, s{sT0} offen sc1", counted=False)
        g.label(f"L_slow1_{tag}")
        g(f"s_cmp_lg_u32 s{sW}, 2\ns_cbranch_scc1 L_slow2_{tag}")
        g(f"s_add_u32 s{sT0}, s{sMlSt}, {WS_SLOW}\ns_mov_b64 exec, 0x11")
        g.vmem(f"buffer_store_dwordx4 {vr(vG)}, v{vMlWr}, {srd(sWS)}, s{sT0} offen sc1", counted=False)
        g("s_mov_b64 exec, -1")
        g.label(f"L_slow2_{tag}")

    g.label("L_hop1_poll")
    SETS = [128, 160, 192][:cfg.nsets]
    RL, R0, R1 = vAcc0, vAcc0 + 1, vAcc0 + 2
    X = vAcc1
    B0 = SETS[0]
    o_loads = [(vL16, sOld, 1024 * i) for i in range(4)]
    ml_loads = [(vMlRd, sMlLd, 256 * i) for i in range(4)]
    h1_loads = o_loads + ml_loads
    mreg = [B0 + 16 + 4 * i for i in range(4)]

    def h1_weights():
        MX, TT = vT0, vT1
        m = mreg
        g(f"""
        v_max3_f32 v{MX}, v{m[0]}, v{m[1]}, v{m[2]}
        v_max_f32 v{MX}, v{MX}, v{m[3]}
        v_mov_b32 v{TT}, v{MX}
        v_permlane32_swap_b32 v{MX}, v{TT}
        v_max_f32 v{MX}, v{MX}, v{TT}
        """)
        for i in range(4):
            g(f"v_sub_f32 v{m[i]}, v{m[i]}, v{MX}")
        for i in range(4):
            g(f"v_exp_f32 v{m[i]}, v{m[i]}")
        g(f"v_mul_f32 v{RL}, v{m[0]}, v{m[0]+2}")
        for i in range(1, 4):
            g(f"v_fmac_f32 v{RL}, v{m[i]}, v{m[i]+2}")
        g(f"""
        v_mov_b32 v{X}, v{RL}
        v_permlane32_swap_b32 v{RL}, v{X}
        v_add_f32 v{RL}, v{RL}, v{X}
        v_rcp_f32 v{RL}, v{RL}
        """)
        for i in range(4):
            g(f"v_mul_f32 v{m[i]}, v{m[i]}, v{RL}")

    g("s_mov_b32 s90, 0")
    poll_masked("m1", B0 + 16, ml_loads, cfg.sleep1, bound=cfg.nfast, timeout="L_ml_late")
    h1_weights()
    g.label("L_ml_join")
    g("s_barrier")
    g(f"s_cmp_lg_u32 s90, 0\ns_cbranch_scc1 L_h1_slow")
    poll_masked("h1", B0, o_loads, cfg.sleep1, bound=cfg.nfast, timeout="L_h1_slow")
    g.label("L_h1_have")
    g(f"v_mul_f32 v{R0}, v{mreg[0]}, v{B0}\nv_mul_f32 v{R1}, v{mreg[0]}, v{B0+2}")
    for i in range(1, 4):
        g(f"v_fmac_f32 v{R0}, v{mreg[i]}, v{B0+4*i}\nv_fmac_f32 v{R1}, v{mreg[i]}, v{B0+4*i+2}")
    stamp("hop1_seen")
    vstamp("#h1_left", sCnt)
    if cfg.lite2:
        g("s_memrealtime s[90:91]")
    g(f"""
    v_mov_b32 v{X+1}, v{R0}
    v_mov_b32 v{X+2}, v{R1}
    v_mov_b32 v{vT1}, 0
    v_permlane32_swap_b32 v{R0}, v{X+1}
    v_permlane32_swap_b32 v{R1}, v{X+2}
    v_mov_b32 v{vT0}, 0
    v_add_f32 v{R0}, v{R0}, v{X+1}
    v_add_f32 v{R1}, v{R1}, v{X+2}
    v_cvt_pk_bf16_f32 v{R0}, v{R0}, v{R1}
    ds_write_b32 v{vObWr}, v{R0} offset:{L_OB}
    """)
    g(f"ds_write_b32 v{vT0}, v{vT1} offset:{L_ST}")
    g.label("L_hop1_join")
    g("s_waitcnt lgkmcnt(0)\ns_barrier")
    g(f"s_cmp_eq_u32 s{sW}, 0\ns_cbranch_scc1 L_hop2")
    vYD = 16
    g(f"""
    v_mov_b32 v{vT0}, 0
    ds_read_b32 v{vT1}, v{vT0} offset:{L_ST}
    ds_read_b128 {vr(vA)}, v{vObRd} offset:{L_OB}
    ds_read_b128 {vr(vA+4)}, v{vObRd} offset:{L_OB+64}
    s_waitcnt lgkmcnt(2)
    v_readfirstlane_b32 s{sT1}, v{vT1}
    s_cmp_lg_u32 s{sT1}, 0
    s_cbranch_scc1 L_y_slow
    s_waitcnt lgkmcnt(1)
    """)
    for c in range(NT):
        g(f"v_mfma_f32_16x16x32_bf16 {vr(vYD+4*c)}, {vr(vA)}, {ar(aWO+4*c)}, 0")
    g("s_waitcnt lgkmcnt(0)")
    for c in range(NT):
        g(f"v_mfma_f32_16x16x32_bf16 {vr(vYD+4*c)}, {vr(vA+4)}, {ar(aWO+4*NT+4*c)}, {vr(vYD+4*c)}")
    g(f"""
    s_mov_b32 s{sT2}, 0x55555555
    s_cmp_eq_u32 s{sW}, 1
    s_cselect_b32 s{sT0}, s{sT2}, 0x5555
    """)
    for k, (G, vY, yb) in enumerate(((vG0, vY0, vYB), (vG1, vY1, vYB + 1))):
        d = vYD + 16 * k
        g(f"""
        v_cndmask_b32 v{vT0}, v{d}, v{d+4}, s[86:87]
        v_cndmask_b32 v{vT1}, v{d+8}, v{d+12}, s[86:87]
        v_cndmask_b32 v{G}, v{vT0}, v{vT1}, s[88:89]
        v_fma_f32 v{G}, v{G}, s{sG_}, v{yb}
        """)
    g(f"""
    v_cndmask_b32 v{vG2}, v{vYD+32}, v{vYD+36}, s[86:87]
    v_fma_f32 v{vG2}, v{vG2}, s{sG_}, v{vYB2}
    """)
    for G in (vG0, vG1, vG2):
        g(f"v_mov_b32_dpp v{G+2}, v{G} quad_perm:[1,1,3,3] row_mask:0xf bank_mask:0xf")
    g(f"s_mov_b32 exec_lo, s{sT2}\ns_mov_b32 exec_hi, s{sT2}")
    g.vmem(f"buffer_store_dwordx4 {vr(vG0)}, v{vY0}, {srd(sWS)}, s{sYst} offen sc1", counted=False)
    g.vmem(f"buffer_store_dwordx4 {vr(vG1)}, v{vY1}, {srd(sWS)}, s{sYst} offen sc1", counted=False)
    g(f"s_mov_b32 exec_lo, s{sT0}\ns_mov_b32 exec_hi, 0")
    g.vmem(f"buffer_store_dwordx4 {vr(vG2)}, v{vY2}, {srd(sWS)}, s{sYst} offen sc1", counted=False)
    g("s_mov_b64 exec, -1")
    stamp("y_published")
    g(f"s_cmp_lg_u32 s91, 0\ns_cbranch_scc1 L_finish")
    slow_copies("late")
    g("s_branch L_finish")

    g.label("L_y_slow")
    g("s_waitcnt lgkmcnt(0)")
    slow_copies("early")
    g("s_mov_b32 s91, 1")
    g("s_barrier")
    g("s_branch L_hop1_join")
    g.label("L_h1_slow")
    if cfg.probe == "slow:0":
        g("s_mov_b32 s101, 1")
    g(f"v_mov_b32 v{vT1}, 1\nv_mov_b32 v{vT0}, 0\nds_write_b32 v{vT0}, v{vT1} offset:{L_ST}")
    g("s_waitcnt lgkmcnt(0)\ns_barrier")
    g("s_barrier")
    g(f"s_xor_b32 s{sOld}, s{sOld}, {WS_SLOW}\ns_xor_b32 s{sMlLd}, s{sMlLd}, {WS_SLOW}")
    poll_masked("h1s", B0, h1_loads, cfg.sleep1, toggle=(sOld, sMlLd))
    h1_weights()
    g("s_branch L_h1_have")
    g.label("L_ml_late")
    g("s_mov_b32 s90, 1")
    g("s_branch L_ml_join")
    g.label("L_hop2")
    g(f"s_cmp_ge_u32 s{sP}, 56\ns_cbranch_scc1 L_finish")

    def h2_reduce(base):
        for off in (0, 2):
            g(f"v_add_f32 v{base+off}, v{base+off}, v{base+4+off}\nv_add_f32 v{base+8+off}, v{base+8+off}, v{base+12+off}")
        g(f"v_add_f32 v{vP}, v{base}, v{base+8}\nv_add_f32 v{vP+2}, v{base+2}, v{base+10}")

    poll_masked("h2", SETS[0], [(vL16, sYld, 1024 * i) for i in range(4)], cfg.sleep2)
    h2_reduce(SETS[0])
    stamp("hop2_seen")
    vstamp("#h2_left", sCnt)
    if cfg.lite2:
        g("s_memrealtime s[92:93]")
    for sh in (4, 8):
        g(f"""
        v_add_f32_dpp v{vP}, v{vP}, v{vP} row_ror:{sh} row_mask:0xf bank_mask:0xf
        v_add_f32_dpp v{vP+2}, v{vP+2}, v{vP+2} row_ror:{sh} row_mask:0xf bank_mask:0xf
        """)
    g(f"""
    v_mov_b32 v{vP+1}, v{vP}
    v_mov_b32 v{vP+3}, v{vP+2}
    v_permlane16_swap_b32 v{vP}, v{vP+1}
    v_permlane16_swap_b32 v{vP+2}, v{vP+3}
    v_add_f32 v{vP}, v{vP}, v{vP+1}
    v_add_f32 v{vP+2}, v{vP+2}, v{vP+3}
    v_mov_b32 v{vP+1}, v{vP}
    v_mov_b32 v{vP+3}, v{vP+2}
    v_permlane32_swap_b32 v{vP}, v{vP+1}
    v_permlane32_swap_b32 v{vP+2}, v{vP+3}
    v_add_f32 v{vP}, v{vP}, v{vP+1}
    v_add_f32 v{vP+2}, v{vP+2}, v{vP+3}
    v_lshlrev_b32 v{vT0}, 2, v{vL}
    v_cvt_pk_bf16_f32 v{vP}, v{vP}, v{vP+2}
    s_mov_b64 exec, 0xf
    """)
    if probe:
        g(f"s_cmp_eq_u32 s101, 1\ns_cbranch_scc0 L_probe_ok\nv_mov_b32 v{vP}, 0x7fc07fc0")
        g.label("L_probe_ok")
    g.vmem(f"buffer_store_dword v{vP}, v{vT0}, {srd(sOUT)}, s{sOutOff} offen {cfg.outflags}", counted=False)
    g(f"s_cmp_lg_u32 s{sP}, 0\ns_cbranch_scc1 L_finish")
    g(f"""
    s_mov_b64 exec, 1
    s_lshl_b32 s{sT0}, s{sB}, 8
    v_mov_b32 v{vP+4}, s{sTag}
    v_mov_b32 v{vP+5}, 0
    """)
    g.vmem(f"buffer_store_dword v{vP+4}, v{vP+5}, {srd(sWS)}, s{sT0} offen sc1", counted=False)
    g.label("L_finish")
    if dbg:
        g("s_mov_b64 exec, -1")
        stamp("end")
        g(f"""
        s_lshl_b32 s{sT0}, s2, 2
        s_add_u32 s{sT0}, s{sT0}, s{sW}
        s_lshl_b32 s{sT0}, s{sT0}, 8
        s_add_u32 s{sT0}, s{sT0}, {WS_DBG}
        v_lshlrev_b32 v{vT0}, 2, v{vL}
        buffer_store_dword v{vStamp}, v{vT0}, {srd(sWS)}, s{sT0} offen
        s_cmp_lg_u32 s{sW}, 0
        s_cbranch_scc1 L_exit
        s_memrealtime s[98:99]
        s_waitcnt lgkmcnt(0)
        v_mov_b32 v{vP}, s100
        v_mov_b32 v{vP+1}, s101
        v_mov_b32 v{vP+2}, s98
        v_mov_b32 v{vP+3}, s99
        s_lshl_b32 s{sT0}, s2, 4
        s_add_u32 s{sT0}, s{sT0}, {WS_T}
        v_mov_b32 v{vT0}, 0
        s_mov_b64 exec, 1
        buffer_store_dwordx4 {vr(vP)}, v{vT0}, {srd(sWS)}, s{sT0} offen
        """)
    if cfg.lite2:
        g(f"""
        s_mov_b64 exec, -1
        s_memrealtime s[98:99]
        s_waitcnt lgkmcnt(0)
        v_mov_b32 v{vP}, s96
        v_mov_b32 v{vP+1}, s90
        v_mov_b32 v{vP+2}, s92
        v_mov_b32 v{vP+3}, s98
        s_lshl_b32 s{sT0}, s2, 2
        s_add_u32 s{sT0}, s{sT0}, s{sW}
        s_lshl_b32 s{sT0}, s{sT0}, 4
        s_add_u32 s{sT0}, s{sT0}, {WS_DBG}
        v_mov_b32 v{vT0}, 0
        s_mov_b64 exec, 1
        buffer_store_dwordx4 {vr(vP)}, v{vT0}, {srd(sWS)}, s{sT0} offen
        """)
    if cfg.lite:
        g(f"""
        s_mov_b64 exec, -1
        s_cmp_lg_u32 s{sW}, 0
        s_cbranch_scc1 L_exit
        s_memrealtime s[98:99]
        s_waitcnt lgkmcnt(0)
        v_mov_b32 v{vP}, s100
        v_mov_b32 v{vP+1}, s101
        v_mov_b32 v{vP+2}, s98
        v_mov_b32 v{vP+3}, s99
        s_lshl_b32 s{sT0}, s2, 4
        s_add_u32 s{sT0}, s{sT0}, {WS_T}
        v_mov_b32 v{vT0}, 0
        s_mov_b64 exec, 1
        buffer_store_dwordx4 {vr(vP)}, v{vT0}, {srd(sWS)}, s{sT0} offen
        """)
    if cfg.hdebug:
        g(f"""
        s_mov_b64 exec, -1
        s_memrealtime s[98:99]
        s_waitcnt lgkmcnt(0)
        s_not_b32 s100, s100
        v_writelane_b32 v{vStamp}, s98, 0
        v_writelane_b32 v{vStamp}, s100, 1
        s_mov_b32 s28, s24
        s_mov_b32 s29, s25
        s_mov_b32 s30, 256
        s_mov_b32 s31, 0x20000
        v_lshlrev_b32 v{vT0}, 2, v{vL}
        s_mov_b64 exec, 0xffff
        buffer_atomic_umax v{vStamp}, v{vT0}, s[28:31], 0 offen
        """)
    g.label("L_exit")
    g("s_endpgm")
    body = g.finalize()

    ref = open("cdna_kernels/" + NAME + ".s.ref").read().split("\n")
    head = [l for l in ref if l.startswith(";") and "@launch" not in l and "Override" not in l and "grid=ceil" not in l]
    head = head[:head.index(next(l for l in head if "d_ws" in l)) + 1]
    txt = "\n".join(head) + "\n"
    txt += f"; @launch grid=(256,1,1) block=(256,1,1) lds={LDS_BYTES}\n"
    txt += HEADER
    txt += '.amdgcn_target "amdgcn-amd-amdhsa--gfx950"\n.text\n'
    txt += f".globl {NAME}_kernel\n.p2align 8\n.type {NAME}_kernel,@function\n{NAME}_kernel:\n"
    txt += body
    txt += f""".section .rodata,"a"
.p2align 6
.amdhsa_kernel {NAME}_kernel
  .amdhsa_next_free_vgpr 512
  .amdhsa_next_free_sgpr 102
  .amdhsa_accum_offset 256
  .amdhsa_group_segment_fixed_size 0
  .amdhsa_kernarg_size 96
  .amdhsa_user_sgpr_count 2
  .amdhsa_user_sgpr_kernarg_segment_ptr 1
  .amdhsa_system_sgpr_workgroup_id_x 1
.end_amdhsa_kernel
"""
    return txt, stamp_names, g.nops


def parse(argv=None):
    ap = argparse.ArgumentParser()
    ap.add_argument("-o", default="cdna_kernels/" + NAME + ".s")
    ap.add_argument("--debug", action="store_true")
    ap.add_argument("--probe", default="")
    ap.add_argument("--ablate", default="")
    ap.add_argument("--lite", action="store_true")
    ap.add_argument("--lite2", action="store_true")
    ap.add_argument("--hdebug", action="store_true")
    ap.add_argument("--hdebug_sel", default="")
    ap.add_argument("--kflags", default="nt")
    ap.add_argument("--vflags", default="nt")
    ap.add_argument("--xilv", type=int, default=1)
    ap.add_argument("--A1", default="KKX" + "QK" * 14 + "WK" * 6)
    ap.add_argument("--A2", default="WK" * 8 + "G" + "DK" * 6)
    ap.add_argument("--B", default="pDKDKDKTDKDKDKDK")
    ap.add_argument("--wflags", default="nt")
    ap.add_argument("--wqflags", default=None)
    ap.add_argument("--w1flags", default="")
    ap.add_argument("--spin", type=int, default=100000)
    ap.add_argument("--thrA", type=int, default=0)
    ap.add_argument("--thrS", type=int, default=0)
    ap.add_argument("--la", type=int, default=30)
    ap.add_argument("--lamid", type=int, default=36)
    ap.add_argument("--decay", type=int, default=1)
    ap.add_argument("--midloads", type=int, default=1)
    ap.add_argument("--oflags", default="")
    ap.add_argument("--outflags", default="")
    ap.add_argument("--nfast", type=int, default=24)
    ap.add_argument("--rot", type=int, default=1)
    ap.add_argument("--flipb", type=int, default=0)
    ap.add_argument("--midextra", type=int, default=0)
    ap.add_argument("--lateidle", type=int, default=0)
    ap.add_argument("--roundqk", type=int, default=1)
    ap.add_argument("--earlyml", type=int, default=1)
    ap.add_argument("--swapbad", type=int, default=1)
    ap.add_argument("--bar4", type=int, default=1)
    ap.add_argument("--bar5", type=int, default=0)
    ap.add_argument("--touch", type=int, default=0)
    ap.add_argument("--preflags", default="sc1")
    ap.add_argument("--nsets", type=int, default=3)
    ap.add_argument("--stagger", type=int, default=3)
    ap.add_argument("--sleep1", type=int, default=0)
    ap.add_argument("--sleep2", type=int, default=0)
    cfg = ap.parse_args(argv)
    if cfg.lite2:
        cfg.lite = True
    return cfg


if __name__ == "__main__":
    cfg = parse()
    txt, names, nops = build(cfg)
    open(cfg.o, "w").write(txt)
    print("wrote", cfg.o, "nops inserted:", nops, "stamps:", names)
```

```python
import argparse, sys
from asmlib import Gen

NAME = "gated_mix__gqa_block_cached__dense_activation_relu__decode"

WS_EP = 0x0
WS_Q = 0x1000
WS_ML = 0x20000
WS_O = 0x40000
WS_Y = 0x200000
WS_SLOW = 0x400000
WS_DBG = 0x800000
WS_T = 0xFF00000

L_QP = 0
L_HP = L_QP + 2048
L_QB = L_HP + 1024
L_HB = L_QB + 1024
L_MX = L_HB + 128
L_LP = L_MX + 128
L_OB = L_LP + 128
L_ST = L_OB + 128
L_AC = L_ST + 128
L_WO = L_AC + 8192
L_W2 = L_WO + 57344
LDS_BYTES = L_W2 + 28672 + 128

sX, sWQ, sW1, sK, sV, sWO, sW2, sG, sWS, sOUT = 28, 32, 36, 40, 44, 48, 52, 56, 60, 64
sHKV, sS, sB, sW, sTag, sP, sGrp = 68, 69, 70, 71, 72, 73, 74
sT0, sT1, sT2, sT3, sT4 = 75, 76, 77, 78, 79
sKoff, sVoff, sC, sSelLo, sSelHi, sCnt = 80, 81, 82, 83, 84, 85
sG_, sOMG = 94, 95
sDmaG, sDmaL = 96, 97
sKeySl = 90


def srd(b):
    return f"s[{b}:{b+3}]"


def vr(b, n=4):
    return f"v[{b}:{b+n-1}]"


def ar(b, n=4):
    return f"a[{b}:{b+n-1}]"


vTid, vL, vKoff, vVoff = 0, 1, 2, 3
vPM = 4
vQ = 8
vAcc0, vAcc1, vLacc, vOnes = 16, 20, 24, 28
vS = 32
vD = 64
vA = 80
vWq, vW1, vX, vL16, vM, vT0, vT1, vStamp = 88, 89, 90, 91, 92, 93, 94, 95
vP = 96
vWQd, vW1d, vXd, vMQ, vMH, vXdup, vAq, vAh, vDq, vDh, vGx, vGw = 128, 184, 212, 220, 224, 226, 228, 236, 240, 244, 248, 252
aWO, aW2 = 128, 208
NT = 10


HEADER = """;
;            8 workgroups of the (b, hkv) group through tagged granules in d_ws
; Hand-off granule: 16 B = (data, tag, data, tag); tag = epoch word of the batch row in d_ws + constant, and the
"""


def build(cfg):
    g = Gen()
    g.virtual = set()
    dbg = cfg.debug
    wf = cfg.wflags
    nstamp = [0]
    stamp_names = []

    hd = cfg.hdebug
    hd_sel = cfg.hdebug_sel.split(",") if cfg.hdebug_sel else []

    probe = cfg.probe.split(":") if cfg.probe else None

    def stamp(name):
        if probe and name == probe[0]:
            g(f"s_memrealtime s[98:99]\ns_waitcnt lgkmcnt(0)\ns_sub_u32 s98, s98, s100\ns_cmp_gt_u32 s98, {probe[1]}\ns_cselect_b32 s101, 1, 0")
        if hd and name in hd_sel:
            k = 2 + hd_sel.index(name)
            g(f"s_memrealtime s[98:99]\ns_waitcnt lgkmcnt(0)\nv_writelane_b32 v{vStamp}, s98, {k}")
        if not dbg:
            return
        g(f"s_memrealtime s[98:99]\ns_waitcnt lgkmcnt(0)\nv_writelane_b32 v{vStamp}, s98, {nstamp[0]}")
        stamp_names.append(name)
        nstamp[0] += 1

    def vstamp(name, sreg):
        if not dbg:
            return
        g(f"v_writelane_b32 v{vStamp}, s{sreg}, {nstamp[0]}")
        stamp_names.append(name)
        nstamp[0] += 1

    def poll_masked(name, base, loads, sleep, bound=None, timeout=None, toggle=(), preissued=False):
        n = len(loads)
        pend = [28 + 2 * i for i in range(n)]
        tv = [vS + 24 + i for i in range(n)]
        for i, (va, so, imm) in enumerate(loads):
            if not preissued:
                g.vmem(f"buffer_load_dwordx4 {vr(base+4*i)}, v{va}, {srd(sWS)}, s{so} offen offset:{imm} sc1", counted=False)
        g(f"s_mov_b32 s{sCnt}, {bound or cfg.spin}")
        if dbg:
            g(f"s_mov_b32 s59, {32 if name.startswith('h1') else 46}")
        g.label(f"L_{name}_loop")
        g("s_waitcnt vmcnt(0)")
        if dbg:
            g(f"s_memrealtime s[98:99]\ns_waitcnt lgkmcnt(0)\ns_mov_b32 m0, s59\ns_nop 3\nv_writelane_b32 v{vStamp}, s98, m0\ns_add_u32 s59, s59, 1\ns_min_u32 s59, s59, {45 if name.startswith('h1') else 60}")
        for i in range(n):
            g(f"v_bitop3_b32 v{tv[i]}, v{base+4*i+1}, v{base+4*i+3}, s{sTag} bitop3:0x7e")
        g(f"v_or3_b32 v{vT0}, v{tv[0]}, v{tv[1]}, v{tv[2]}")
        k = 3
        while k < n:
            if k + 1 < n:
                g(f"v_or3_b32 v{vT0}, v{vT0}, v{tv[k]}, v{tv[k+1]}")
                k += 2
            else:
                g(f"v_or_b32 v{vT0}, v{vT0}, v{tv[k]}")
                k += 1
        g(f"v_cmp_ne_u32 vcc, 0, v{vT0}")
        g("s_cmp_eq_u64 vcc, 0")
        g(f"s_cbranch_scc1 L_{name}_done")
        if name[1] in cfg.ablate:
            g(f"s_branch L_{name}_done")
        for i in range(n):
            g(f"v_cmp_ne_u32 s[{pend[i]}:{pend[i]+1}], 0, v{tv[i]}")
        g(f"s_sub_u32 s{sCnt}, s{sCnt}, 1")
        g(f"s_cbranch_scc1 {timeout or ('L_' + name + '_done')}")
        if sleep:
            g(f"s_sleep {sleep}")
        for r in toggle:
            g(f"s_xor_b32 s{r}, s{r}, {WS_SLOW}")
        for i, (va, so, imm) in enumerate(loads):
            g(f"s_mov_b64 exec, s[{pend[i]}:{pend[i]+1}]")
            g(f"s_cbranch_execz L_{name}_skip{i}")
            g.vmem(f"buffer_load_dwordx4 {vr(base+4*i)}, v{va}, {srd(sWS)}, s{so} offen offset:{imm} sc1", counted=False)
            g.label(f"L_{name}_skip{i}")
        g("s_mov_b64 exec, -1")
        g(f"s_branch L_{name}_loop")
        g.label(f"L_{name}_done")

    g("s_cmp_ge_u32 s2, 256")
    g("s_cbranch_scc1 L_exit")
    g("s_load_dwordx16 s[4:19], s[0:1], 0")
    g("s_load_dwordx8 s[20:27], s[0:1], 64")
    if dbg or cfg.hdebug or cfg.probe or cfg.lite:
        g(f"v_mov_b32 v{vStamp}, 0")
        g("s_memrealtime s[100:101]")
        if cfg.probe == "slow:0":
            g("s_waitcnt lgkmcnt(0)\ns_mov_b32 s101, 0")
    g(f"""
    v_lshrrev_b32 v{vT0}, 6, v{vTid}
    v_and_b32 v{vL}, 63, v{vTid}
    s_and_b32 s{sHKV}, s2, 7
    v_readfirstlane_b32 s{sW}, v{vT0}
    s_lshr_b32 s{sT0}, s2, 3
    v_bfe_u32 v{vP+2}, v{vL}, 2, 2
    {("s_lshr_b32 s%d, s%d, 2" % (sS, sT0)) if cfg.lateidle else ("s_and_b32 s%d, s%d, 7" % (sS, sT0))}
    v_lshrrev_b32 v{vP+3}, 4, v{vL}
    {("s_and_b32 s%d, s%d, 3" % (sB, sT0)) if cfg.lateidle else ("s_lshr_b32 s%d, s%d, 3" % (sB, sT0))}
    {"s_xor_b32 s%d, s%d, 3" % (sB, sB) if cfg.flipb else ""}
    v_and_b32 v{vP+4}, 3, v{vL}
    s_lshl_b32 s{sGrp}, s{sB}, 3
    v_lshlrev_b32 v{vKoff}, 9, v{vP+2}
    s_add_u32 s{sGrp}, s{sGrp}, s{sHKV}
    v_lshl_add_u32 v{vKoff}, v{vP+3}, 6, v{vKoff}
    s_lshl_b32 s{sT2}, s{sW}, 11
    v_lshl_add_u32 v{vKoff}, v{vP+4}, 4, v{vKoff}
    s_lshl_b32 s{sT3}, s{sGrp}, 21
    v_add_u32 v{vKoff}, s{sT2}, v{vKoff}
    s_lshl_b32 s{sT1}, s{sS}, 18
    s_add_u32 s{sT3}, s{sT3}, s{sT1}
    """)

    def late_prologue():
        if cfg.lateidle:
            g.comment("role index: the last-dispatched split of a head (physical 7) gets the role without dense-branch work")
            g(f"""
            s_mov_b32 s{sKeySl}, s{sS}
            s_lshr_b32 s{sT1}, s10, 7
            s_sub_u32 s{sT1}, 4, s{sT1}
            s_add_u32 s{sS}, s{sS}, s{sT1}
            s_and_b32 s{sS}, s{sS}, 7
            """)
        g(f"""
        s_lshl_b32 s{sP}, s{sHKV}, 3
        s_add_u32 s{sP}, s{sP}, s{sS}
        v_lshrrev_b32 v{vT1}, 3, v{vL}
        v_and_b32 v{vP}, 7, v{vL}
        v_lshlrev_b32 v{vL16}, 4, v{vL}
        """)
        g(f"""
        v_mul_u32_u24 v{vP+1}, 14, v{vT1}
        s_mul_i32 s{sT1}, s{sW}, 112
        v_add_u32 v{vP+1}, s{sT1}, v{vP+1}
        v_lshlrev_b32 v{vX}, 1, v{vP+1}
        v_lshlrev_b32 v{vWq}, 13, v{vP+1}
        v_lshl_add_u32 v{vWq}, v{vP}, 4, v{vWq}
        v_mul_u32_u24 v{vW1}, 3584, v{vP+1}
        v_lshl_add_u32 v{vW1}, v{vP}, 3, v{vW1}
        v_and_b32 v{vP+5}, 15, v{vL}
        s_lshl_b32 s{sT2}, s{sW}, 11
        v_lshlrev_b32 v{vVoff}, 9, v{vP+3}
        v_lshl_add_u32 v{vVoff}, v{vP+5}, 4, v{vVoff}
        v_add_u32 v{vVoff}, s{sT2}, v{vVoff}
        """)
    g("s_waitcnt lgkmcnt(0)")
    if dbg:
        g(f"v_writelane_b32 v{vStamp}, s100, 63")

    def mk(dst, ptr, off_sgpr, size):
        if off_sgpr is None:
            g(f"s_mov_b32 s{dst}, s{ptr}\ns_mov_b32 s{dst+1}, s{ptr+1}")
        else:
            g(f"s_add_u32 s{dst}, s{ptr}, s{off_sgpr}\ns_addc_u32 s{dst+1}, s{ptr+1}, 0")
        if size is not None:
            g(f"s_mov_b32 s{dst+2}, {size}")
        g(f"s_mov_b32 s{dst+3}, 0x20000")

    mk(sK, 6, sT3, 262144)

    late_desc = []
    def desc_x():
        g(f"s_mul_i32 s{sT1}, s{sB}, 896")
        mk(sX, 4, sT1, 896)
    def desc_wq():
        g(f"s_lshl_b32 s{sT1}, s{sP}, 7")
        mk(sWQ, 10, sT1, None)
        g(f"s_sub_u32 s{sWQ+2}, 3670016, s{sT1}")
    def desc_v():
        g(f"s_lshl_b32 s{sT1}, s{sGrp}, 21\ns_lshl_b32 s{sT2}, s{sKeySl if cfg.lateidle else sS}, 18\ns_add_u32 s{sT1}, s{sT1}, s{sT2}")
        mk(sV, 8, sT1, 262144)
    def desc_w1():
        g.comment("seven of the eight splits of a head take a slice of hidden units; the one without is the split whose")
        if cfg.swapbad:
            g(f"s_lshr_b32 s{sT0}, s10, 7\ns_add_u32 s{sT0}, s{sT0}, s{sS}\ns_sub_u32 s{sT0}, s{sT0}, 4\ns_and_b32 s{sT2}, s{sT0}, 7")
        else:
            g(f"s_mov_b32 s{sT2}, s{sS}")
        g(f"s_mul_i32 s{sT0}, s{sHKV}, 7\ns_add_u32 s{sT0}, s{sT0}, s{sT2}")
        g(f"s_lshl_b32 s{sT1}, s{sT0}, 6")
        mk(sW1, 16, sT1, None)
        g(f"s_sub_u32 s{sW1+2}, 1605632, s{sT1}")
        g(f"s_mul_i32 s{sT1}, s{sT0}, 28672")
        mk(sW2, 18, sT1, 28672)
        g(f"s_cmp_eq_u32 s{sT2}, 7\ns_cselect_b32 s{sW1+2}, 0, s{sW1+2}\ns_cselect_b32 s{sW2+2}, 0, s{sW2+2}")
        mk(sG, 20, None, 896)
    def desc_wo():
        g(f"s_mul_i32 s{sT1}, s{sP}, 57344")
        mk(sWO, 12, sT1, 57344)

    kl = [0]

    thr = [cfg.thrA]

    def throttle():
        if thr[0] and len(g.vm) >= thr[0]:
            g(f"s_waitcnt vmcnt({thr[0]-1})")

    def kv_load():
        k = kl[0]
        if k >= 128:
            return
        kl[0] += 1
        throttle()
        isv = k >= 64
        kk = k - 64 if isv else k
        i, t = kk >> 1, kk & 1
        so = sVoff if isv else sKoff
        if kk % 2 == 0:
            if kk == 0:
                if cfg.rot:
                    g.comment("every 2 MB page starts its walk at its own phase (head*4 + batch) * 8 KB and wraps in the slice")
                    g(f"s_lshl_b32 s{so}, s{sHKV}, 2\ns_add_u32 s{so}, s{so}, s{sB}\ns_lshl_b32 s{so}, s{so}, 13")
                else:
                    g(f"s_mov_b32 s{so}, 0")
            else:
                g(f"s_add_u32 s{so}, s{so}, 8192")
                if cfg.rot:
                    g(f"s_and_b32 s{so}, s{so}, 0x3ffff")
        imm = t * 256
        if not isv:
            dst, va, sr = ar(4 * kk), vKoff, sK
        else:
            dst = vr(128 + 4 * kk) if kk < 32 else ar(4 * (kk - 32))
            va, sr = vVoff, sV
        fl = cfg.vflags if isv else cfg.kflags
        g.vmem(f"buffer_load_dwordx4 {dst}, v{va}, {srd(sr)}, s{so} offen offset:{imm} {fl}", ("kv", k))

    qi, wi = [0], [0]
    n_after_poll = [None]
    xops = [("dwo", k) for k in range(14)] + [("dw2", k) for k in range(7)]
    xi = [0]
    sWqOff, sW1Off, sDb = 14, 15, 3

    def x_op():
        if xi[0] >= len(xops):
            return
        kind, i = xops[xi[0]]
        xi[0] += 1
        throttle()
        if "D" in cfg.ablate:
            if kind == "dwo" and i == 0:
                desc_wo()
            g.virtual.add("dma")
            return
        if kind == "dwo":
            if i == 0:
                desc_wo()
                g(f"s_mul_i32 s{sDmaG}, s{sW}, 14336")
            if i % 4 == 0:
                g(f"s_add_u32 s{sDb}, s{sDmaG}, {i*1024}\ns_add_u32 m0, s{sDb}, {L_WO}")
            g.vmem(f"buffer_load_dwordx4 v{vL16}, {srd(sWO)}, s{sDb} offen offset:{(i%4)*1024} {wf} lds", "dma")
        else:
            if i == 0:
                g(f"s_mul_i32 s{sDmaL}, s{sW}, 7168")
            if i % 4 == 0:
                g(f"s_add_u32 s{sDb}, s{sDmaL}, {i*1024}\ns_add_u32 m0, s{sDb}, {L_W2}")
            g.vmem(f"buffer_load_dwordx4 v{vL16}, {srd(sW2)}, s{sDb} offen offset:{(i%4)*1024} {wf} lds", "dma")

    def emit_poll():
        g.comment("wave 0 polls the group's q granules, queued behind the loads issued so far")
        g(f"s_cmp_lg_u32 s{sW}, 0\ns_cbranch_scc1 L_nopoll")
        g(f"s_lshl_b32 s{sT4}, s{sGrp}, 11\ns_add_u32 s{sT4}, s{sT4}, {WS_Q}")
        g.vmem(f"buffer_load_dwordx4 {vr(vP)}, v{vL16}, {srd(sWS)}, s{sT4} offen sc1", counted=False)
        g.vmem(f"buffer_load_dwordx4 {vr(vP+4)}, v{vL16}, {srd(sWS)}, s{sT4} offen offset:1024 sc1", counted=False)
        g.label("L_nopoll")
        n_after_poll[0] = len(g.vm)

    def issue(sched):
        for op in sched:
            if op == "K":
                kv_load()
            elif op == "X":
                late_prologue()
                desc_x()
                g.vmem(f"buffer_load_dwordx4 {vr(vXd)}, v{vX}, {srd(sX)}, 0 offen", "x")
                g.vmem(f"buffer_load_dwordx3 v[{vXd+4}:{vXd+6}], v{vX}, {srd(sX)}, 0 offen offset:16", "x")
            elif op == "Q":
                i = qi[0]; qi[0] += 1
                throttle()
                if i == 0:
                    desc_wq()
                    g(f"s_mov_b32 s{sWqOff}, 0")
                    if "L" in cfg.ablate:
                        g(f"s_mul_i32 s{sT1}, s{sP}, 57344\ns_add_u32 s{sWQ}, s10, s{sT1}\ns_addc_u32 s{sWQ+1}, s11, 0\ns_mov_b32 s{sWQ+2}, 57344")
                        g(f"s_mul_i32 s{sT1}, s{sW}, 14336\nv_add_u32 v{vWq}, s{sT1}, v{vL16}")
                else:
                    g(f"s_add_u32 s{sWqOff}, s{sWqOff}, {1024 if 'L' in cfg.ablate else 8192}")
                g.vmem(f"buffer_load_dwordx4 {vr(vWQd+4*i)}, v{vWq}, {srd(sWQ)}, s{sWqOff} offen {cfg.wqflags if cfg.wqflags is not None else wf}", ("wq", i))
            elif op == "W" and "W" in cfg.ablate:
                i = wi[0]; wi[0] += 1
                if i == 0:
                    desc_w1()
                g.virtual.add(("w1", i))
            elif op == "W":
                i = wi[0]; wi[0] += 1
                throttle()
                if i == 0:
                    desc_w1()
                    g(f"s_mov_b32 s{sW1Off}, 0")
                else:
                    g(f"s_add_u32 s{sW1Off}, s{sW1Off}, 3584")
                g.vmem(f"buffer_load_dwordx2 v[{vW1d+2*i}:{vW1d+2*i+1}], v{vW1}, {srd(sW1)}, s{sW1Off} offen {cfg.w1flags if cfg.w1flags is not None else wf}", ("w1", i))
            elif op == "G":
                g.vmem(f"buffer_load_dwordx4 {vr(vGx)}, v{vL16}, {srd(sX)}, 0 offen", "gate")
                g.vmem(f"buffer_load_dwordx4 {vr(vGw)}, v{vL16}, {srd(sG)}, 0 offen", "gate")
            elif op == "D":
                x_op()
            elif op in "TU":
                g.comment("read the tail's inbox lines once, so that they are cache-resident when they get written")
                if op == "T":
                    g(f"""
                    s_lshl_b32 s{sT0}, s{sGrp}, 15
                    s_lshl_b32 s{sT1}, s{sS}, 12
                    s_add_u32 s{sT0}, s{sT0}, s{sT1}
                    s_lshl_b32 s{sT1}, s{sW}, 10
                    s_add_u32 s{sT0}, s{sT0}, s{sT1}
                    s_add_u32 s{sT0}, s{sT0}, {WS_O}
                    """)
                    throttle()
                    g.vmem(f"buffer_load_dwordx4 {vr(vA)}, v{vL16}, {srd(sWS)}, s{sT0} offen {cfg.preflags}", "pre")
                    g(f"""
                    s_lshl_b32 s{sT0}, s{sGrp}, 10
                    s_lshl_b32 s{sT1}, s{sW}, 8
                    s_add_u32 s{sT0}, s{sT0}, s{sT1}
                    s_add_u32 s{sT0}, s{sT0}, {WS_ML}
                    v_lshrrev_b32 v{vT1}, 5, v{vL}
                    v_lshlrev_b32 v{vT1}, 7, v{vT1}
                    """)
                    throttle()
                    g.vmem(f"buffer_load_dword v{vA+4}, v{vT1}, {srd(sWS)}, s{sT0} offen {cfg.preflags}", "pre")
                g(f"""
                s_mul_i32 s{sT0}, s{sB}, {56*4096}
                s_lshl_b32 s{sT1}, s{sP}, 12
                s_add_u32 s{sT0}, s{sT0}, s{sT1}
                s_lshl_b32 s{sT1}, s{sW}, 10
                s_add_u32 s{sT0}, s{sT0}, s{sT1}
                s_add_u32 s{sT0}, s{sT0}, {WS_Y}
                """)
                throttle()
                g.vmem(f"buffer_load_dwordx4 {vr(vA)}, v{vL16}, {srd(sWS)}, s{sT0} offen {cfg.preflags}", "pre")
            elif op == "p":
                emit_poll()
            else:
                raise ValueError(op)

    issue(cfg.A1)
    desc_v()
    assert qi[0] == 14
    stamp("A_issued")

    g(f"s_lshl_b32 s{sT0}, s{sB}, 8")
    g(f"s_load_dword s{sTag}, s[26:27], s{sT0}")
    mk(sWS, 26, None, 0x10000000 if (dbg or cfg.lite) else 0x600000)
    mk(sOUT, 22, None, 3584)
    g(f"""
    s_mov_b32 s{sC}, 0x3db8aa3b
    s_mov_b32 s{sSelLo}, 0x01000100
    s_mov_b32 s{sSelHi}, 0x03020302
    """)
    half = vT0
    g(f"""
    v_and_b32 v{half}, 1, v{vL}
    v_lshlrev_b32 v{half}, 4, v{half}
    v_mov_b32 v{vT1}, 0xffff
    v_lshlrev_b32 v{half}, v{half}, v{vT1}
    v_bfe_u32 v{vP}, v{vL}, 1, 2
    v_bfe_u32 v{vP+1}, v{vL}, 1, 1
    v_bfe_u32 v{vP+2}, v{vL}, 3, 1
    v_lshl_add_u32 v{vP+2}, v{vP+2}, 1, v{vP+1}
    """)
    for r in range(4):
        g(f"v_cmp_eq_u32 s[{86+2*(r&3)}:{87+2*(r&3)}], {r}, v{vP}")
    for r in range(4):
        g(f"v_cndmask_b32 v{vMQ+r}, 0, v{half}, s[{86+2*r}:{87+2*r}]")
    for r in range(2):
        g(f"v_cmp_eq_u32 s[{86+2*r}:{87+2*r}], {r}, v{vP+1}")
    for r in range(2):
        g(f"v_cndmask_b32 v{vMH+r}, 0, v{half}, s[{86+2*r}:{87+2*r}]")
    for r in range(4):
        g(f"v_cmp_eq_u32 s[{86+2*r}:{87+2*r}], {r}, v{vP+2}")
    for r in range(4):
        g(f"v_cndmask_b32 v{vPM+r}, 0, v{half}, s[{86+2*r}:{87+2*r}]")
    g("s_waitcnt lgkmcnt(0)")
    g(f"s_add_u32 s{sTag}, s{sTag}, 0x9e3779b9")

    def xdup(i):
        sel = sSelHi if i & 1 else sSelLo
        r = vXd + (i >> 1)
        g(f"v_perm_b32 v{vXdup}, v{r}, v{r}, s{sel}")

    def prep_q(i):
        xdup(i)
        for r in range(4):
            g(f"v_and_b32 v{vAq + 4*(i&1) + r}, v{vXdup}, v{vMQ+r}")

    g.wait_vm("x")
    prep_q(0)
    for i in range(14):
        if i < 13:
            prep_q(i + 1)
        g.wait_vm(("wq", i))
        c = "0" if i == 0 else vr(vDq)
        g(f"v_mfma_f32_16x16x32_bf16 {vr(vDq)}, {vr(vAq + 4*(i&1))}, {vr(vWQd + 4*i)}, {c}")
    stamp("wq_landed")
    g(f"""
    v_lshrrev_b32 v{vT0}, 5, v{vL}
    s_lshl_b32 s{sT0}, s{sW}, 1
    v_add_u32 v{vT0}, s{sT0}, v{vT0}
    v_lshlrev_b32 v{vT0}, 8, v{vT0}
    v_and_b32 v{vT1}, 7, v{vL}
    v_lshl_add_u32 v{vT0}, v{vT1}, 5, v{vT0}
    v_bfe_u32 v{vT1}, v{vL}, 4, 1
    v_lshl_add_u32 v{vT0}, v{vT1}, 4, v{vT0}
    s_mov_b32 exec_lo, 0x00ff00ff
    s_mov_b32 exec_hi, 0xff00ff00
    ds_write_b128 v{vT0}, {vr(vDq)} offset:{L_QP}
    s_mov_b64 exec, -1
    s_waitcnt lgkmcnt(0)
    s_barrier
    """)
    g(f"s_cmp_lg_u32 s{sW}, 0\ns_cbranch_scc1 L_qpub_done")
    g(f"s_mov_b64 exec, 0xffff")
    for k in range(8):
        g(f"ds_read_b128 {vr(vP+4*k)}, v{vL16} offset:{L_QP + 256*k}")
    g(f"s_lshl_b32 s{sT0}, s{sGrp}, 11\ns_lshl_b32 s{sT1}, s{sS}, 8\ns_add_u32 s{sT0}, s{sT0}, s{sT1}\ns_add_u32 s{sT0}, s{sT0}, {WS_Q}")
    g(f"v_mov_b32 v{vD+1}, s{sTag}\nv_mov_b32 v{vD+3}, s{sTag}")
    g("s_waitcnt lgkmcnt(0)")
    for k in (1, 3, 5, 7):
        for j in range(4):
            g(f"v_add_f32 v{vP+4*(k-1)+j}, v{vP+4*(k-1)+j}, v{vP+4*k+j}")
    for k in (2, 6):
        for j in range(4):
            g(f"v_add_f32 v{vP+4*(k-2)+j}, v{vP+4*(k-2)+j}, v{vP+4*k+j}")
    for j in range(4):
        g(f"v_add_f32 v{vP+j}, v{vP+j}, v{vP+16+j}")
    g(f"v_cvt_pk_bf16_f32 v{vD}, v{vP}, v{vP+1}\nv_cvt_pk_bf16_f32 v{vD+2}, v{vP+2}, v{vP+3}")
    g.vmem(f"buffer_store_dwordx4 {vr(vD)}, v{vL16}, {srd(sWS)}, s{sT0} offen sc1", counted=False)
    g("s_mov_b64 exec, -1")
    g.label("L_qpub_done")
    stamp("q_published")

    if cfg.touch:
        g.comment("warm the address translation of the pages that the tail touches first")
        g(f"v_mov_b32 v{vT1}, 0")
        g(f"s_mul_i32 s{sT0}, s{sB}, {56*8192}\ns_add_u32 s{sT0}, s{sT0}, {WS_Y}")
        g.vmem(f"buffer_load_dword v{vD+8}, v{vT1}, {srd(sWS)}, s{sT0} offen sc1", "touch")
        g(f"s_add_u32 s{sT0}, s{sT0}, {56*8192-4}")
        g.vmem(f"buffer_load_dword v{vD+9}, v{vT1}, {srd(sWS)}, s{sT0} offen sc1", "touch")
        g.vmem(f"buffer_load_dword v{vD+10}, v{vT1}, {srd(sOUT)}, 0 offen sc1", "touch")
    issue(cfg.A2)
    assert wi[0] == 14
    def prep_h(i):
        xdup(i)
        for r in range(2):
            g(f"v_and_b32 v{vAh + 2*(i&1) + r}, v{vXdup}, v{vMH+r}")

    prep_h(0)
    for i in range(14):
        if i < 13:
            prep_h(i + 1)
        if i in (0, 6, 13):
            g.wait_vm(("w1", {0: 5, 6: 12, 13: 13}[i]))
        c = "0" if i == 0 else vr(vDh)
        g(f"v_mfma_f32_16x16x16_bf16 {vr(vDh)}, v[{vAh+2*(i&1)}:{vAh+2*(i&1)+1}], v[{vW1d+2*i}:{vW1d+2*i+1}], {c}")
    g(f"""
    v_lshrrev_b32 v{vT0}, 5, v{vL}
    s_lshl_b32 s{sT0}, s{sW}, 1
    v_add_u32 v{vT0}, s{sT0}, v{vT0}
    v_lshlrev_b32 v{vT0}, 7, v{vT0}
    v_and_b32 v{vT1}, 7, v{vL}
    v_lshl_add_u32 v{vT0}, v{vT1}, 4, v{vT0}
    s_mov_b32 exec_lo, 0x000000ff
    s_mov_b32 exec_hi, 0x0000ff00
    ds_write_b128 v{vT0}, {vr(vDh)} offset:{L_HP}
    s_mov_b64 exec, -1
    """)

    g.wait_vm("gate")
    acc = vP + 8
    for r in range(4):
        a, b2, c2, d2 = vP + 9, vP + 10, vP + 11, vP + 12
        g(f"""
        v_lshlrev_b32 v{a}, 16, v{vGx+r}
        v_and_b32 v{b2}, 0xffff0000, v{vGx+r}
        v_lshlrev_b32 v{c2}, 16, v{vGw+r}
        v_and_b32 v{d2}, 0xffff0000, v{vGw+r}
        v_mul_f32 v{a}, v{a}, v{c2}
        v_mul_f32 v{b2}, v{b2}, v{d2}
        v_cvt_pk_bf16_f32 v{a}, v{a}, v{b2}
        v_and_b32 v{b2}, 0xffff0000, v{a}
        v_lshlrev_b32 v{a}, 16, v{a}
        """)
        if r == 0:
            g(f"v_add_f32 v{acc}, v{a}, v{b2}")
        else:
            g(f"v_add_f32 v{acc}, v{acc}, v{a}\nv_add_f32 v{acc}, v{acc}, v{b2}")
    for sh in (8, 4, 2, 1):
        g(f"v_add_f32_dpp v{acc}, v{acc}, v{acc} row_ror:{sh} row_mask:0xf bank_mask:0xf")
    g(f"""
    v_readlane_b32 s{sT0}, v{acc}, 0
    v_readlane_b32 s{sT1}, v{acc}, 16
    v_readlane_b32 s{sT2}, v{acc}, 32
    v_readlane_b32 s{sT3}, v{acc}, 48
    v_mov_b32 v{acc}, s{sT0}
    v_add_f32 v{acc}, s{sT1}, v{acc}
    v_add_f32 v{acc}, s{sT2}, v{acc}
    v_add_f32 v{acc}, s{sT3}, v{acc}
    v_cvt_pk_bf16_f32 v{acc}, v{acc}, v{acc}
    v_and_b32 v{acc}, 0xffff0000, v{acc}
    v_mul_f32 v{acc}, 0xbfb8aa3b, v{acc}
    v_exp_f32 v{acc}, v{acc}
    v_add_f32 v{acc}, 1.0, v{acc}
    v_rcp_f32 v{acc}, v{acc}
    v_cvt_pk_bf16_f32 v{acc}, v{acc}, v{acc}
    v_and_b32 v{acc}, 0xffff0000, v{acc}
    v_sub_f32 v{acc+1}, 1.0, v{acc}
    v_cvt_pk_bf16_f32 v{acc+1}, v{acc+1}, v{acc+1}
    v_and_b32 v{acc+1}, 0xffff0000, v{acc+1}
    v_readfirstlane_b32 s{sG_}, v{acc}
    v_readfirstlane_b32 s{sOMG}, v{acc+1}
    """)

    issue(cfg.B)
    assert n_after_poll[0] is not None
    cfgP = kl[0]
    stamp("B_issued")

    def seq_load():
        if xi[0] < len(xops) and kl[0] < 128:
            for _ in range(cfg.xilv):
                x_op()
        kv_load()

    def advance(consumed, la):
        while kl[0] < min(consumed + la, 128):
            seq_load()

    def la_at(u):
        return max(cfg.la, cfgP - cfg.decay * u)

    thr[0] = cfg.thrS

    g(f"s_cmp_lg_u32 s{sW}, 0\ns_cbranch_scc1 L_qwait_done")
    n = min(len(g.vm) - n_after_poll[0], 63)
    g(f"s_waitcnt vmcnt({n})")
    g(f"s_mov_b32 s{sCnt}, {cfg.spin}")
    g.label("L_qcheck")
    for r in (1, 3, 5, 7):
        g(f"v_cmpx_eq_u32 vcc, s{sTag}, v{vP+r}")
    g("s_cmp_eq_u64 exec, -1")
    g("s_mov_b64 exec, -1")
    g("s_cbranch_scc1 L_qok")
    g(f"s_sub_u32 s{sCnt}, s{sCnt}, 1\ns_cbranch_scc1 L_qok")
    g("s_sleep 2")
    g.vmem(f"buffer_load_dwordx4 {vr(vP)}, v{vL16}, {srd(sWS)}, s{sT4} offen sc1", counted=False)
    g.vmem(f"buffer_load_dwordx4 {vr(vP+4)}, v{vL16}, {srd(sWS)}, s{sT4} offen offset:1024 sc1", counted=False)
    g("s_waitcnt vmcnt(0)")
    g("s_branch L_qcheck")
    g.label("L_qok")
    vstamp("#q_left", sCnt)
    g(f"v_lshlrev_b32 v{vT0}, 3, v{vL}")
    g(f"v_add_u32 v{vT0}, {L_QB}, v{vT0}")
    g(f"ds_write2_b32 v{vT0}, v{vP}, v{vP+2} offset0:0 offset1:1")
    g(f"ds_write2_b32 v{vT0}, v{vP+4}, v{vP+6} offset0:128 offset1:129")
    g.label("L_qwait_done")
    g("s_waitcnt lgkmcnt(0)\ns_barrier")
    stamp("q_ready")

    g(f"""
    v_bfe_u32 v{vT0}, v{vL}, 2, 1
    v_lshlrev_b32 v{vT0}, 9, v{vT0}
    v_lshrrev_b32 v{vT1}, 4, v{vL}
    v_lshl_add_u32 v{vT0}, v{vT1}, 6, v{vT0}
    v_and_b32 v{vT1}, 3, v{vL}
    v_lshl_add_u32 v{vT0}, v{vT1}, 4, v{vT0}
    ds_read_b128 {vr(vQ)}, v{vT0} offset:{L_QB}
    ds_read_b128 {vr(vQ+4)}, v{vT0} offset:{L_QB+256}
    """)
    g(f"s_cmp_lg_u32 s{sW}, 1\ns_cbranch_scc1 L_h_done")
    g("s_mov_b64 exec, 0xff")
    for k in range(8):
        g(f"ds_read_b128 {vr(vP+4*k)}, v{vL16} offset:{L_HP + 128*k}")
    g("s_waitcnt lgkmcnt(0)")
    for k in (1, 3, 5, 7):
        for j in range(4):
            g(f"v_add_f32 v{vP+4*(k-1)+j}, v{vP+4*(k-1)+j}, v{vP+4*k+j}")
    for k in (2, 6):
        for j in range(4):
            g(f"v_add_f32 v{vP+4*(k-2)+j}, v{vP+4*(k-2)+j}, v{vP+4*k+j}")
    for j in range(4):
        g(f"v_add_f32 v{vP+j}, v{vP+j}, v{vP+16+j}")
    for j in range(4):
        g(f"v_max_f32 v{vP+j}, 0, v{vP+j}")
    g(f"""
    v_cvt_pk_bf16_f32 v{vP+4}, v{vP}, v{vP+1}
    v_cvt_pk_bf16_f32 v{vP+5}, v{vP+2}, v{vP+3}
    v_lshlrev_b32 v{vT0}, 3, v{vL}
    ds_write_b64 v{vT0}, v[{vP+4}:{vP+5}] offset:{L_HB}
    s_mov_b64 exec, -1
    """)
    g.label("L_h_done")
    g("s_waitcnt lgkmcnt(0)")

    def qk_reduce(i):
        d = vD + 4 * (i & 3)
        s = vS + i
        g(f"v_mov_b32_dpp v{s}, v{d} quad_perm:[0,0,0,0] row_mask:0xf bank_mask:0xf")
        for c in (1, 2, 3):
            g(f"v_add_f32_dpp v{s}, v{d+c}, v{s} quad_perm:[{c},{c},{c},{c}] row_mask:0xf bank_mask:0xf")
        if cfg.roundqk:
            g(f"v_cvt_pk_bf16_f32 v{s}, v{s}, v{s}\nv_and_b32 v{s}, 0xffff0000, v{s}")
        if i == 0:
            g(f"v_mov_b32 v{vM}, v{s}")
        else:
            g(f"v_max_f32 v{vM}, v{vM}, v{s}")

    for i in range(32):
        g.wait_vm(("kv", 2 * i + 1))
        d = vr(vD + 4 * (i & 3))
        g(f"v_mfma_f32_16x16x32_bf16 {d}, {ar(8*i)}, {vr(vQ)}, 0")
        g(f"v_mfma_f32_16x16x32_bf16 {d}, {ar(8*i+4)}, {vr(vQ+4)}, {d}")
        if i > 0:
            qk_reduce(i - 1)
        advance(2 * i + 2, la_at(i + 1) if i < 31 else max(la_at(32), cfg.lamid))
    qk_reduce(31)
    stamp("qk_done")
    g(f"""
    v_mov_b32 v{vT0}, v{vM}
    v_permlane32_swap_b32 v{vM}, v{vT0}
    v_max_f32 v{vM}, v{vM}, v{vT0}
    v_mov_b32 v{vT0}, v{vM}
    v_permlane16_swap_b32 v{vM}, v{vT0}
    v_max_f32 v{vM}, v{vM}, v{vT0}
    v_bfe_u32 v{vT0}, v{vL}, 2, 1
    v_lshlrev_b32 v{vT1}, 4, v{vT0}
    s_lshl_b32 s{sT0}, s{sW}, 2
    v_add_u32 v{vT0}, s{sT0}, v{vT1}
    s_mov_b64 exec, 0x11
    ds_write_b32 v{vT0}, v{vM} offset:{L_MX}
    s_mov_b64 exec, -1
    """)
    while xi[0] < len(xops):
        x_op()
    g.wait_vm("dma")
    g(f"""
    s_waitcnt lgkmcnt(0)
    s_barrier
    ds_read_b128 {vr(vP)}, v{vT1} offset:{L_MX}
    """)
    for _ in range(cfg.midextra):
        seq_load()
    vTr, vTr2 = vD + 12, vD + 13
    sColB = 12
    g(f"""
    s_cmp_eq_u32 s{sW}, 2
    s_cselect_b32 s{sColB}, 320, 0
    s_cmp_eq_u32 s{sW}, 3
    s_cselect_b32 s{sColB}, 608, s{sColB}
    v_lshrrev_b32 v{vP+4}, 4, v{vL}
    v_bfe_u32 v{vTr}, v{vL}, 2, 2
    v_lshl_add_u32 v{vTr}, v{vP+4}, 3, v{vTr}
    v_mul_u32_u24 v{vTr}, 896, v{vTr}
    v_and_b32 v{vP+6}, 3, v{vL}
    v_lshl_add_u32 v{vTr}, v{vP+6}, 3, v{vTr}
    v_add_u32 v{vTr}, s{sColB}, v{vTr}
    v_lshlrev_b32 v{vP+4}, 4, v{vP+4}
    ds_read_b128 {vr(vA)}, v{vP+4} offset:{L_HB}
    v_add_u32 v{vTr2}, {L_W2}, v{vTr}
    s_waitcnt lgkmcnt(0)
    """)
    for c in range(NT):
        for hf in range(2):
            g(f"ds_read_b64_tr_b16 {ar(aW2 + 4*c + 2*hf, 2)}, v{vTr2} offset:{hf*3584 + c*32}")
    g(f"""
    v_max3_f32 v{vM}, v{vP}, v{vP+1}, v{vP+2}
    v_max_f32 v{vM}, v{vM}, v{vP+3}
    v_mul_f32 v{vM}, s{sC}, v{vM}
    """)
    for i in range(0, 32, 4):
        for j in range(4):
            g(f"v_fma_f32 v{vS+i+j}, v{vS+i+j}, s{sC}, -v{vM}")
        for j in range(4):
            g(f"v_exp_f32 v{vS+i+j}, v{vS+i+j}")
        for j in range(4):
            if i + j < 2:
                g(f"v_mov_b32 v{vLacc+i+j}, v{vS+i+j}")
            else:
                g(f"v_add_f32 v{vLacc+(j&1)}, v{vLacc+(j&1)}, v{vS+i+j}")
        for j in range(4):
            g(f"v_cvt_pk_bf16_f32 v{vS+i+j}, v{vS+i+j}, v{vS+i+j}")
        for _ in range(cfg.midloads):
            seq_load()
    g(f"""
    v_add_f32 v{vLacc}, v{vLacc}, v{vLacc+1}
    v_bfe_u32 v{vT1}, v{vL}, 2, 1
    v_mov_b32 v{vLacc+1}, v{vLacc}
    v_lshlrev_b32 v{vT1}, 4, v{vT1}
    v_permlane32_swap_b32 v{vLacc}, v{vLacc+1}
    s_lshl_b32 s{sT0}, s{sW}, 2
    v_add_f32 v{vLacc}, v{vLacc}, v{vLacc+1}
    v_add_u32 v{vT1}, s{sT0}, v{vT1}
    v_mov_b32 v{vLacc+1}, v{vLacc}
    v_permlane16_swap_b32 v{vLacc}, v{vLacc+1}
    v_add_f32 v{vLacc}, v{vLacc}, v{vLacc+1}
    s_mov_b64 exec, 0x11
    ds_write_b32 v{vT1}, v{vLacc} offset:{L_LP}
    s_mov_b64 exec, -1
    """)
    g("s_waitcnt lgkmcnt(0)")
    if cfg.earlyml:
        g("s_barrier")
    for _ in range(cfg.midextra):
        seq_load()
    for t in range(2):
        for c in range(NT):
            for hf in range(2):
                g(f"ds_read_b64_tr_b16 {ar(aWO + (t*NT+c)*4 + 2*hf, 2)}, v{vTr} offset:{L_WO + t*28672 + hf*3584 + c*32}")
    g(f"""
    s_mov_b32 s86, 0xffff0000
    s_mov_b32 s87, 0xffff0000
    s_mov_b32 s88, 0
    s_mov_b32 s89, -1
    """)
    vG0, vG1, vG2 = vD, vD + 4, vD + 8
    for c in range(8):
        g(f"v_mfma_f32_16x16x32_bf16 {vr(vP+4*c)}, {vr(vA)}, {ar(aW2+4*c)}, 0")
    vYB = vTr2 + 1
    for G in (vG0, vG1, vG2):
        g(f"v_mov_b32 v{G+1}, s{sTag}\nv_mov_b32 v{G+3}, s{sTag}")
    g(f"""
    v_cndmask_b32 v{vT0}, v{vP}, v{vP+4}, s[86:87]
    v_cndmask_b32 v{vT1}, v{vP+8}, v{vP+12}, s[86:87]
    v_cndmask_b32 v{vYB}, v{vT0}, v{vT1}, s[88:89]
    v_cndmask_b32 v{vT0}, v{vP+16}, v{vP+20}, s[86:87]
    v_cndmask_b32 v{vT1}, v{vP+24}, v{vP+28}, s[86:87]
    v_cndmask_b32 v{vYB+1}, v{vT0}, v{vT1}, s[88:89]
    """)
    for c in (8, 9):
        g(f"v_mfma_f32_16x16x32_bf16 {vr(vP+4*(c-8))}, {vr(vA)}, {ar(aW2+4*c)}, 0")
    vYB2 = vQ + 7
    g(f"v_mul_f32 v{vYB}, s{sOMG}, v{vYB}\nv_mul_f32 v{vYB+1}, s{sOMG}, v{vYB+1}")
    g(f"v_cndmask_b32 v{vYB2}, v{vP}, v{vP+4}, s[86:87]")
    g(f"v_mul_f32 v{vYB2}, s{sOMG}, v{vYB2}")
    if cfg.earlyml:
        g.comment("wave 2 publishes the fast copy of (max, sum) per head now; the tail only has to carry the o values")
        g(f"s_cmp_lg_u32 s{sW}, 2\ns_cbranch_scc1 L_ml_done")
        vE = vP + 24
        g(f"""
        v_bfe_u32 v{vT1}, v{vL}, 2, 1
        v_lshlrev_b32 v{vT1}, 4, v{vT1}
        s_mov_b64 exec, 0x11
        ds_read_b128 {vr(vP+12)}, v{vT1} offset:{L_LP}
        s_lshl_b32 s{sT0}, s{sGrp}, 10
        s_lshl_b32 s{sT1}, s{sS}, 7
        s_add_u32 s{sT0}, s{sT0}, s{sT1}
        s_add_u32 s{sT0}, s{sT0}, {WS_ML}
        v_mov_b32 v{vE}, v{vM}
        v_mov_b32 v{vE+1}, s{sTag}
        v_mov_b32 v{vE+3}, s{sTag}
        s_waitcnt lgkmcnt(0)
        v_add_f32 v{vP+12}, v{vP+12}, v{vP+13}
        v_add_f32 v{vP+14}, v{vP+14}, v{vP+15}
        v_add_f32 v{vE+2}, v{vP+12}, v{vP+14}
        """)
        g.vmem(f"buffer_store_dwordx4 {vr(vE)}, v{vT1}, {srd(sWS)}, s{sT0} offen {cfg.oflags}", counted=False)
        g("s_mov_b64 exec, -1")
        g.label("L_ml_done")
    stamp("mid_done")

    for _ in range(cfg.midextra):
        seq_load()
    vAc, vLp, vRd, vOad, vY0, vY1, vY2 = vQ, vQ + 1, vQ + 2, vQ + 3, vQ + 4, vQ + 5, vQ + 6
    vObRd, vObWr, vMlRd, vMlWr = vWq, vW1, vX, vKoff
    sOst, sOld, sMlSt, sMlLd, sYst, sYld, sYld2, sOutOff, sOst2 = 4, 5, 6, 7, 8, 9, 10, 11, 13
    g(f"""
    v_lshrrev_b32 v{vT0}, 4, v{vL}
    v_and_b32 v{vT1}, 1, v{vT0}
    s_lshl_b32 s{sT0}, s{sW}, 11
    v_lshlrev_b32 v{vAc}, 10, v{vT1}
    v_add_u32 v{vAc}, s{sT0}, v{vAc}
    v_lshrrev_b32 v{vT0}, 1, v{vT0}
    v_lshl_add_u32 v{vAc}, v{vT0}, 4, v{vAc}
    v_and_b32 v{vT0}, 15, v{vL}
    v_lshl_add_u32 v{vAc}, v{vT0}, 5, v{vAc}
    """)
    g(f"""
    s_cmp_eq_u32 s{sW}, 1
    s_cselect_b32 s{sT0}, 0, s{sW}
    s_lshl_b32 s{sT1}, s{sT0}, 9
    v_lshlrev_b32 v{vRd}, 3, v{vL}
    v_add_u32 v{vRd}, s{sT1}, v{vRd}
    s_lshl_b32 s{sT1}, s{sT0}, 13
    v_lshrrev_b32 v{vT0}, 5, v{vL}
    v_lshlrev_b32 v{vOad}, 12, v{vT0}
    v_add_u32 v{vOad}, s{sT1}, v{vOad}
    v_and_b32 v{vT0}, 31, v{vL}
    v_lshl_add_u32 v{vOad}, v{vT0}, 4, v{vOad}
    """)
    g(f"""
    s_lshr_b32 s{sT0}, s{sColB}, 4
    v_lshrrev_b32 v{vY0}, 3, v{vL}
    v_add_u32 v{vY0}, s{sT0}, v{vY0}
    v_lshlrev_b32 v{vY0}, 12, v{vY0}
    v_bfe_u32 v{vY1}, v{vL}, 1, 2
    v_lshl_add_u32 v{vY0}, v{vY1}, 4, v{vY0}
    v_add_u32 v{vY1}, 32768, v{vY0}
    v_add_u32 v{vY2}, 65536, v{vY0}
    v_lshrrev_b32 v{vObRd}, 4, v{vL}
    v_lshlrev_b32 v{vObRd}, 4, v{vObRd}
    v_and_b32 v{vObWr}, 31, v{vL}
    v_lshlrev_b32 v{vObWr}, 2, v{vObWr}
    v_lshrrev_b32 v{vMlRd}, 5, v{vL}
    v_lshlrev_b32 v{vMlRd}, 7, v{vMlRd}
    v_bfe_u32 v{vMlWr}, v{vL}, 2, 1
    v_lshlrev_b32 v{vMlWr}, 4, v{vMlWr}
    s_lshl_b32 s{sOst}, s{sGrp}, 15
    s_lshl_b32 s{sT1}, s{sS}, 9
    s_add_u32 s{sOld}, s{sOst}, {WS_O}
    s_add_u32 s{sOst}, s{sOld}, s{sT1}
    s_add_u32 s{sOst2}, s{sOst}, 8192
    s_lshl_b32 s{sT1}, s{sS}, 12
    s_add_u32 s{sOld}, s{sOld}, s{sT1}
    s_lshl_b32 s{sMlSt}, s{sGrp}, 10
    s_add_u32 s{sMlSt}, s{sMlSt}, {WS_ML}
    s_lshr_b32 s{sT1}, s{sS}, 2
    s_lshl_b32 s{sT1}, s{sT1}, 4
    s_add_u32 s{sMlLd}, s{sMlSt}, s{sT1}
    s_lshl_b32 s{sT1}, s{sS}, 7
    s_add_u32 s{sMlSt}, s{sMlSt}, s{sT1}
    s_mul_i32 s{sYst}, s{sB}, {56*4096}
    s_add_u32 s{sYst}, s{sYst}, {WS_Y}
    s_lshl_b32 s{sT1}, s{sP}, 12
    s_add_u32 s{sYld}, s{sYst}, s{sT1}
    s_lshl_b32 s{sT1}, s{sP}, 6
    s_add_u32 s{sYst}, s{sYst}, s{sT1}
    s_mul_i32 s{sOutOff}, s{sB}, 896
    s_lshl_b32 s{sT1}, s{sP}, 4
    s_add_u32 s{sOutOff}, s{sOutOff}, s{sT1}
    """)

    g("s_mov_b32 s91, 0")
    for _ in range(cfg.midextra):
        seq_load()
    def prep_p(i):
        for r in range(4):
            g(f"v_and_b32 v{vA + 4*(i&1) + r}, v{vS+i}, v{vPM+r}")

    prep_p(0)
    for i in range(32):
        a = vr(vA + 4 * (i & 1))
        if i < 31:
            prep_p(i + 1)
        g.wait_vm(("kv", 64 + 2 * i + 1))
        for t, accr in ((0, vAcc0), (1, vAcc1)):
            kk = 2 * i + t
            src = vr(128 + 4 * kk) if kk < 32 else ar(4 * (kk - 32))
            c = "0" if i == 0 else vr(accr)
            g(f"v_mfma_f32_16x16x32_bf16 {vr(accr)}, {a}, {src}, {c}")
        advance(64 + 2 * i + 2, cfg.la)
        if i == cfg.mlstep:
            g.comment("first look at the group's (max, sum) granules; consumed by wave 0 after the last step")
            assert kl[0] == 128
            for k4 in range(4):
                g.vmem(f"buffer_load_dwordx4 {vr(144+4*k4)}, v{vMlRd}, {srd(sWS)}, s{sMlLd} offen offset:{256*k4} sc1", "mlpre")
    assert kl[0] == 128
    stamp("pv_done")
    if cfg.lite2:
        g("s_memrealtime s[96:97]")
    if "E" in cfg.ablate:
        g("s_branch L_finish")

    g(f"""
    ds_write_b128 v{vAc}, {vr(vAcc0)} offset:{L_AC}
    ds_write_b128 v{vAc}, {vr(vAcc1)} offset:{L_AC+512}
    s_waitcnt lgkmcnt(0)
    s_barrier
    """)
    g(f"s_cmp_eq_u32 s{sW}, 0\ns_cbranch_scc1 L_hop1_poll")

    def o_block(base, ldsoff):
        for w in range(4):
            g(f"ds_read_b64 v[{base+2*w}:{base+2*w+1}], v{vRd} offset:{L_AC + 2048*w + ldsoff}")

    def o_sum(base):
        g(f"""
        v_add_f32 v{base}, v{base}, v{base+2}
        v_add_f32 v{base+1}, v{base+1}, v{base+3}
        v_add_f32 v{base+4}, v{base+4}, v{base+6}
        v_add_f32 v{base+5}, v{base+5}, v{base+7}
        v_add_f32 v{base+8}, v{base}, v{base+4}
        v_add_f32 v{base+10}, v{base+1}, v{base+5}
        """)

    vG = vP + 24
    fast = cfg.oflags
    o_block(vP, 0)
    g(f"v_mov_b32 v{vP+9}, s{sTag}\nv_mov_b32 v{vP+11}, s{sTag}")
    g(f"s_cmp_lg_u32 s{sW}, 1\ns_cbranch_scc1 L_o_single")
    o_block(vP + 12, 512)
    g(f"v_mov_b32 v{vP+21}, s{sTag}\nv_mov_b32 v{vP+23}, s{sTag}")
    g("s_waitcnt lgkmcnt(4)")
    o_sum(vP)
    g.vmem(f"buffer_store_dwordx4 {vr(vP+8)}, v{vOad}, {srd(sWS)}, s{sOst} offen {fast}", counted=False)
    g("s_waitcnt lgkmcnt(0)")
    o_sum(vP + 12)
    g.vmem(f"buffer_store_dwordx4 {vr(vP+20)}, v{vOad}, {srd(sWS)}, s{sOst2} offen {fast}", counted=False)
    g("s_branch L_o_done")
    g.label("L_o_single")
    if not cfg.earlyml:
        g.comment("wave 2 also publishes (max, sum) per head")
        g(f"""
        s_mov_b64 exec, 0x11
        ds_read_b128 {vr(vP+12)}, v{vMlWr} offset:{L_LP}
        v_mov_b32 v{vG}, v{vM}
        v_mov_b32 v{vG+1}, s{sTag}
        v_mov_b32 v{vG+3}, s{sTag}
        s_mov_b64 exec, -1
        s_waitcnt lgkmcnt(1)
        """)
    else:
        g("s_waitcnt lgkmcnt(0)")
    o_sum(vP)
    g.vmem(f"buffer_store_dwordx4 {vr(vP+8)}, v{vOad}, {srd(sWS)}, s{sOst} offen {fast}", counted=False)
    if not cfg.earlyml:
        g(f"s_cmp_lg_u32 s{sW}, 2\ns_cbranch_scc1 L_o_done")
        g(f"""
        s_mov_b64 exec, 0x11
        s_waitcnt lgkmcnt(0)
        v_add_f32 v{vP+12}, v{vP+12}, v{vP+13}
        v_add_f32 v{vP+14}, v{vP+14}, v{vP+15}
        v_add_f32 v{vG+2}, v{vP+12}, v{vP+14}
        """)
        g.vmem(f"buffer_store_dwordx4 {vr(vG)}, v{vMlWr}, {srd(sWS)}, s{sMlSt} offen {fast}", counted=False)
        g("s_mov_b64 exec, -1")
    g.label("L_o_done")
    stamp("o_published")
    g("s_barrier")
    g("s_branch L_hop1_join")

    def slow_copies(tag):
        g(f"s_add_u32 s{sT0}, s{sOst}, {WS_SLOW}")
        g.vmem(f"buffer_store_dwordx4 {vr(vP+8)}, v{vOad}, {srd(sWS)}, s{sT0} offen sc1", counted=False)
        g(f"s_cmp_lg_u32 s{sW}, 1\ns_cbranch_scc1 L_slow1_{tag}")
        g(f"s_add_u32 s{sT0}, s{sOst2}, {WS_SLOW}")
        g.vmem(f"buffer_store_dwordx4 {vr(vP+20)}, v{vOad}, {srd(sWS)}, s{sT0} offen sc1", counted=False)
        g.label(f"L_slow1_{tag}")
        g(f"s_cmp_lg_u32 s{sW}, 2\ns_cbranch_scc1 L_slow2_{tag}")
        g(f"s_add_u32 s{sT0}, s{sMlSt}, {WS_SLOW}\ns_mov_b64 exec, 0x11")
        g.vmem(f"buffer_store_dwordx4 {vr(vG)}, v{vMlWr}, {srd(sWS)}, s{sT0} offen sc1", counted=False)
        g("s_mov_b64 exec, -1")
        g.label(f"L_slow2_{tag}")

    g.label("L_hop1_poll")
    SETS = [128, 160, 192][:cfg.nsets]
    RL, R0, R1 = vAcc0, vAcc0 + 1, vAcc0 + 2
    X = vAcc1
    B0 = SETS[0]
    o_loads = [(vL16, sOld, 1024 * i) for i in range(4)]
    ml_loads = [(vMlRd, sMlLd, 256 * i) for i in range(4)]
    h1_loads = o_loads + ml_loads
    mreg = [B0 + 16 + 4 * i for i in range(4)]

    def h1_weights():
        MX, TT = vT0, vT1
        m = mreg
        g(f"""
        v_max3_f32 v{MX}, v{m[0]}, v{m[1]}, v{m[2]}
        v_max_f32 v{MX}, v{MX}, v{m[3]}
        v_mov_b32 v{TT}, v{MX}
        v_permlane32_swap_b32 v{MX}, v{TT}
        v_max_f32 v{MX}, v{MX}, v{TT}
        """)
        for i in range(4):
            g(f"v_sub_f32 v{m[i]}, v{m[i]}, v{MX}")
        for i in range(4):
            g(f"v_exp_f32 v{m[i]}, v{m[i]}")
        g(f"v_mul_f32 v{RL}, v{m[0]}, v{m[0]+2}")
        for i in range(1, 4):
            g(f"v_fmac_f32 v{RL}, v{m[i]}, v{m[i]+2}")
        g(f"""
        v_mov_b32 v{X}, v{RL}
        v_permlane32_swap_b32 v{RL}, v{X}
        v_add_f32 v{RL}, v{RL}, v{X}
        v_rcp_f32 v{RL}, v{RL}
        """)
        for i in range(4):
            g(f"v_mul_f32 v{m[i]}, v{m[i]}, v{RL}")

    g("s_mov_b32 s90, 0")
    poll_masked("m1", B0 + 16, ml_loads, cfg.sleep1, bound=cfg.nfast, timeout="L_ml_late", preissued=cfg.mlstep >= 0)
    h1_weights()
    g.label("L_ml_join")
    g("s_barrier")
    g(f"s_cmp_lg_u32 s90, 0\ns_cbranch_scc1 L_h1_slow")
    poll_masked("h1", B0, o_loads, cfg.sleep1, bound=cfg.nfast, timeout="L_h1_slow")
    g.label("L_h1_have")
    g(f"v_mul_f32 v{R0}, v{mreg[0]}, v{B0}\nv_mul_f32 v{R1}, v{mreg[0]}, v{B0+2}")
    for i in range(1, 4):
        g(f"v_fmac_f32 v{R0}, v{mreg[i]}, v{B0+4*i}\nv_fmac_f32 v{R1}, v{mreg[i]}, v{B0+4*i+2}")
    stamp("hop1_seen")
    vstamp("#h1_left", sCnt)
    if cfg.lite2:
        g("s_memrealtime s[90:91]")
    g(f"""
    v_mov_b32 v{X+1}, v{R0}
    v_mov_b32 v{X+2}, v{R1}
    v_mov_b32 v{vT1}, 0
    v_permlane32_swap_b32 v{R0}, v{X+1}
    v_permlane32_swap_b32 v{R1}, v{X+2}
    v_mov_b32 v{vT0}, 0
    v_add_f32 v{R0}, v{R0}, v{X+1}
    v_add_f32 v{R1}, v{R1}, v{X+2}
    v_cvt_pk_bf16_f32 v{R0}, v{R0}, v{R1}
    ds_write_b32 v{vObWr}, v{R0} offset:{L_OB}
    """)
    g(f"ds_write_b32 v{vT0}, v{vT1} offset:{L_ST}")
    g.label("L_hop1_join")
    g("s_waitcnt lgkmcnt(0)\ns_barrier")
    g(f"s_cmp_eq_u32 s{sW}, 0\ns_cbranch_scc1 L_hop2")
    vYD = 16
    g(f"""
    v_mov_b32 v{vT0}, 0
    ds_read_b32 v{vT1}, v{vT0} offset:{L_ST}
    ds_read_b128 {vr(vA)}, v{vObRd} offset:{L_OB}
    ds_read_b128 {vr(vA+4)}, v{vObRd} offset:{L_OB+64}
    s_waitcnt lgkmcnt(2)
    v_readfirstlane_b32 s{sT1}, v{vT1}
    s_cmp_lg_u32 s{sT1}, 0
    s_cbranch_scc1 L_y_slow
    s_waitcnt lgkmcnt(1)
    """)
    for c in range(NT):
        g(f"v_mfma_f32_16x16x32_bf16 {vr(vYD+4*c)}, {vr(vA)}, {ar(aWO+4*c)}, 0")
    g("s_waitcnt lgkmcnt(0)")
    for c in range(NT):
        g(f"v_mfma_f32_16x16x32_bf16 {vr(vYD+4*c)}, {vr(vA+4)}, {ar(aWO+4*NT+4*c)}, {vr(vYD+4*c)}")
    g(f"""
    s_mov_b32 s{sT2}, 0x55555555
    s_cmp_eq_u32 s{sW}, 1
    s_cselect_b32 s{sT0}, s{sT2}, 0x5555
    """)
    for k, (G, vY, yb) in enumerate(((vG0, vY0, vYB), (vG1, vY1, vYB + 1))):
        d = vYD + 16 * k
        g(f"""
        v_cndmask_b32 v{vT0}, v{d}, v{d+4}, s[86:87]
        v_cndmask_b32 v{vT1}, v{d+8}, v{d+12}, s[86:87]
        v_cndmask_b32 v{G}, v{vT0}, v{vT1}, s[88:89]
        v_fma_f32 v{G}, v{G}, s{sG_}, v{yb}
        """)
    g(f"""
    v_cndmask_b32 v{vG2}, v{vYD+32}, v{vYD+36}, s[86:87]
    v_fma_f32 v{vG2}, v{vG2}, s{sG_}, v{vYB2}
    """)
    for G in (vG0, vG1, vG2):
        g(f"v_mov_b32_dpp v{G+2}, v{G} quad_perm:[1,1,3,3] row_mask:0xf bank_mask:0xf")
    g(f"s_mov_b32 exec_lo, s{sT2}\ns_mov_b32 exec_hi, s{sT2}")
    g.vmem(f"buffer_store_dwordx4 {vr(vG0)}, v{vY0}, {srd(sWS)}, s{sYst} offen sc1", counted=False)
    g.vmem(f"buffer_store_dwordx4 {vr(vG1)}, v{vY1}, {srd(sWS)}, s{sYst} offen sc1", counted=False)
    g(f"s_mov_b32 exec_lo, s{sT0}\ns_mov_b32 exec_hi, 0")
    g.vmem(f"buffer_store_dwordx4 {vr(vG2)}, v{vY2}, {srd(sWS)}, s{sYst} offen sc1", counted=False)
    g("s_mov_b64 exec, -1")
    stamp("y_published")
    g(f"s_cmp_lg_u32 s91, 0\ns_cbranch_scc1 L_finish")
    slow_copies("late")
    g("s_branch L_finish")

    g.label("L_y_slow")
    g("s_waitcnt lgkmcnt(0)")
    slow_copies("early")
    g("s_mov_b32 s91, 1")
    g("s_barrier")
    g("s_branch L_hop1_join")
    g.label("L_h1_slow")
    if cfg.probe == "slow:0":
        g("s_mov_b32 s101, 1")
    g(f"v_mov_b32 v{vT1}, 1\nv_mov_b32 v{vT0}, 0\nds_write_b32 v{vT0}, v{vT1} offset:{L_ST}")
    g("s_waitcnt lgkmcnt(0)\ns_barrier")
    g("s_barrier")
    g(f"s_xor_b32 s{sOld}, s{sOld}, {WS_SLOW}\ns_xor_b32 s{sMlLd}, s{sMlLd}, {WS_SLOW}")
    poll_masked("h1s", B0, h1_loads, cfg.sleep1, toggle=(sOld, sMlLd))
    h1_weights()
    g("s_branch L_h1_have")
    g.label("L_ml_late")
    g("s_mov_b32 s90, 1")
    g("s_branch L_ml_join")
    g.label("L_hop2")
    g(f"s_cmp_ge_u32 s{sP}, 56\ns_cbranch_scc1 L_finish")

    def h2_reduce(base):
        for off in (0, 2):
            g(f"v_add_f32 v{base+off}, v{base+off}, v{base+4+off}\nv_add_f32 v{base+8+off}, v{base+8+off}, v{base+12+off}")
        g(f"v_add_f32 v{vP}, v{base}, v{base+8}\nv_add_f32 v{vP+2}, v{base+2}, v{base+10}")

    poll_masked("h2", SETS[0], [(vL16, sYld, 1024 * i) for i in range(4)], cfg.sleep2)
    h2_reduce(SETS[0])
    stamp("hop2_seen")
    vstamp("#h2_left", sCnt)
    if cfg.lite2:
        g("s_memrealtime s[92:93]")
    for sh in (4, 8):
        g(f"""
        v_add_f32_dpp v{vP}, v{vP}, v{vP} row_ror:{sh} row_mask:0xf bank_mask:0xf
        v_add_f32_dpp v{vP+2}, v{vP+2}, v{vP+2} row_ror:{sh} row_mask:0xf bank_mask:0xf
        """)
    g(f"""
    v_mov_b32 v{vP+1}, v{vP}
    v_mov_b32 v{vP+3}, v{vP+2}
    v_permlane16_swap_b32 v{vP}, v{vP+1}
    v_permlane16_swap_b32 v{vP+2}, v{vP+3}
    v_add_f32 v{vP}, v{vP}, v{vP+1}
    v_add_f32 v{vP+2}, v{vP+2}, v{vP+3}
    v_mov_b32 v{vP+1}, v{vP}
    v_mov_b32 v{vP+3}, v{vP+2}
    v_permlane32_swap_b32 v{vP}, v{vP+1}
    v_permlane32_swap_b32 v{vP+2}, v{vP+3}
    v_add_f32 v{vP}, v{vP}, v{vP+1}
    v_add_f32 v{vP+2}, v{vP+2}, v{vP+3}
    v_lshlrev_b32 v{vT0}, 2, v{vL}
    v_cvt_pk_bf16_f32 v{vP}, v{vP}, v{vP+2}
    s_mov_b64 exec, 0xf
    """)
    if probe:
        g(f"s_cmp_eq_u32 s101, 1\ns_cbranch_scc0 L_probe_ok\nv_mov_b32 v{vP}, 0x7fc07fc0")
        g.label("L_probe_ok")
    g.vmem(f"buffer_store_dword v{vP}, v{vT0}, {srd(sOUT)}, s{sOutOff} offen {cfg.outflags}", counted=False)
    g(f"s_cmp_lg_u32 s{sP}, 0\ns_cbranch_scc1 L_finish")
    g(f"""
    s_mov_b64 exec, 1
    s_lshl_b32 s{sT0}, s{sB}, 8
    v_mov_b32 v{vP+4}, s{sTag}
    v_mov_b32 v{vP+5}, 0
    """)
    g.vmem(f"buffer_store_dword v{vP+4}, v{vP+5}, {srd(sWS)}, s{sT0} offen sc1", counted=False)
    g.label("L_finish")
    if dbg:
        g("s_mov_b64 exec, -1")
        stamp("end")
        g(f"""
        s_lshl_b32 s{sT0}, s2, 2
        s_add_u32 s{sT0}, s{sT0}, s{sW}
        s_lshl_b32 s{sT0}, s{sT0}, 8
        s_add_u32 s{sT0}, s{sT0}, {WS_DBG}
        v_lshlrev_b32 v{vT0}, 2, v{vL}
        buffer_store_dword v{vStamp}, v{vT0}, {srd(sWS)}, s{sT0} offen
        s_cmp_lg_u32 s{sW}, 0
        s_cbranch_scc1 L_exit
        s_memrealtime s[98:99]
        s_waitcnt lgkmcnt(0)
        v_mov_b32 v{vP}, s100
        v_mov_b32 v{vP+1}, s101
        v_mov_b32 v{vP+2}, s98
        v_mov_b32 v{vP+3}, s99
        s_lshl_b32 s{sT0}, s2, 4
        s_add_u32 s{sT0}, s{sT0}, {WS_T}
        v_mov_b32 v{vT0}, 0
        s_mov_b64 exec, 1
        buffer_store_dwordx4 {vr(vP)}, v{vT0}, {srd(sWS)}, s{sT0} offen
        """)
    if cfg.lite2:
        g(f"""
        s_mov_b64 exec, -1
        s_memrealtime s[98:99]
        s_waitcnt lgkmcnt(0)
        v_mov_b32 v{vP}, s96
        v_mov_b32 v{vP+1}, s90
        v_mov_b32 v{vP+2}, s92
        v_mov_b32 v{vP+3}, s98
        s_lshl_b32 s{sT0}, s2, 2
        s_add_u32 s{sT0}, s{sT0}, s{sW}
        s_lshl_b32 s{sT0}, s{sT0}, 4
        s_add_u32 s{sT0}, s{sT0}, {WS_DBG}
        v_mov_b32 v{vT0}, 0
        s_mov_b64 exec, 1
        buffer_store_dwordx4 {vr(vP)}, v{vT0}, {srd(sWS)}, s{sT0} offen
        """)
    if cfg.lite:
        g(f"""
        s_mov_b64 exec, -1
        s_cmp_lg_u32 s{sW}, 0
        s_cbranch_scc1 L_exit
        s_memrealtime s[98:99]
        s_waitcnt lgkmcnt(0)
        v_mov_b32 v{vP}, s100
        v_mov_b32 v{vP+1}, s101
        v_mov_b32 v{vP+2}, s98
        v_mov_b32 v{vP+3}, s99
        s_lshl_b32 s{sT0}, s2, 4
        s_add_u32 s{sT0}, s{sT0}, {WS_T}
        v_mov_b32 v{vT0}, 0
        s_mov_b64 exec, 1
        buffer_store_dwordx4 {vr(vP)}, v{vT0}, {srd(sWS)}, s{sT0} offen
        """)
    if cfg.hdebug:
        g(f"""
        s_mov_b64 exec, -1
        s_memrealtime s[98:99]
        s_waitcnt lgkmcnt(0)
        s_not_b32 s100, s100
        v_writelane_b32 v{vStamp}, s98, 0
        v_writelane_b32 v{vStamp}, s100, 1
        s_mov_b32 s28, s24
        s_mov_b32 s29, s25
        s_mov_b32 s30, 256
        s_mov_b32 s31, 0x20000
        v_lshlrev_b32 v{vT0}, 2, v{vL}
        s_mov_b64 exec, 0xffff
        buffer_atomic_umax v{vStamp}, v{vT0}, s[28:31], 0 offen
        """)
    g.label("L_exit")
    g("s_endpgm")
    body = g.finalize()

    ref = open("cdna_kernels/" + NAME + ".s.ref").read().split("\n")
    head = [l for l in ref if l.startswith(";") and "@launch" not in l and "Override" not in l and "grid=ceil" not in l]
    head = head[:head.index(next(l for l in head if "d_ws" in l)) + 1]
    txt = "\n".join(head) + "\n"
    txt += f"; @launch grid=(256,1,1) block=(256,1,1) lds={LDS_BYTES}\n"
    txt += HEADER
    txt += '.amdgcn_target "amdgcn-amd-amdhsa--gfx950"\n.text\n'
    txt += f".globl {NAME}_kernel\n.p2align 8\n.type {NAME}_kernel,@function\n{NAME}_kernel:\n"
    txt += body
    txt += f""".section .rodata,"a"
.p2align 6
.amdhsa_kernel {NAME}_kernel
  .amdhsa_next_free_vgpr 512
  .amdhsa_next_free_sgpr 102
  .amdhsa_accum_offset 256
  .amdhsa_group_segment_fixed_size 0
  .amdhsa_kernarg_size 96
  .amdhsa_user_sgpr_count 2
  .amdhsa_user_sgpr_kernarg_segment_ptr 1
  .amdhsa_system_sgpr_workgroup_id_x 1
.end_amdhsa_kernel
"""
    return txt, stamp_names, g.nops


def parse(argv=None):
    ap = argparse.ArgumentParser()
    ap.add_argument("-o", default="cdna_kernels/" + NAME + ".s")
    ap.add_argument("--debug", action="store_true")
    ap.add_argument("--probe", default="")
    ap.add_argument("--ablate", default="")
    ap.add_argument("--lite", action="store_true")
    ap.add_argument("--lite2", action="store_true")
    ap.add_argument("--hdebug", action="store_true")
    ap.add_argument("--hdebug_sel", default="")
    ap.add_argument("--kflags", default="nt")
    ap.add_argument("--vflags", default="nt")
    ap.add_argument("--xilv", type=int, default=1)
    ap.add_argument("--A1", default="KKX" + "QK" * 14 + "WK" * 6)
    ap.add_argument("--A2", default="WK" * 8 + "G" + "DK" * 6)
    ap.add_argument("--B", default="pDKDKDKTDKDKDKDK")
    ap.add_argument("--wflags", default="nt")
    ap.add_argument("--wqflags", default=None)
    ap.add_argument("--w1flags", default="")
    ap.add_argument("--spin", type=int, default=100000)
    ap.add_argument("--thrA", type=int, default=0)
    ap.add_argument("--thrS", type=int, default=0)
    ap.add_argument("--la", type=int, default=30)
    ap.add_argument("--lamid", type=int, default=36)
    ap.add_argument("--decay", type=int, default=1)
    ap.add_argument("--midloads", type=int, default=1)
    ap.add_argument("--oflags", default="")
    ap.add_argument("--outflags", default="")
    ap.add_argument("--nfast", type=int, default=24)
    ap.add_argument("--rot", type=int, default=1)
    ap.add_argument("--flipb", type=int, default=0)
    ap.add_argument("--midextra", type=int, default=0)
    ap.add_argument("--lateidle", type=int, default=0)
    ap.add_argument("--mlstep", type=int, default=29)
    ap.add_argument("--roundqk", type=int, default=1)
    ap.add_argument("--earlyml", type=int, default=1)
    ap.add_argument("--swapbad", type=int, default=1)
    ap.add_argument("--bar4", type=int, default=1)
    ap.add_argument("--bar5", type=int, default=0)
    ap.add_argument("--touch", type=int, default=0)
    ap.add_argument("--preflags", default="sc1")
    ap.add_argument("--nsets", type=int, default=3)
    ap.add_argument("--stagger", type=int, default=3)
    ap.add_argument("--sleep1", type=int, default=0)
    ap.add_argument("--sleep2", type=int, default=0)
    cfg = ap.parse_args(argv)
    if cfg.lite2:
        cfg.lite = True
    return cfg


if __name__ == "__main__":
    cfg = parse()
    txt, names, nops = build(cfg)
    open(cfg.o, "w").write(txt)
    print("wrote", cfg.o, "nops inserted:", nops, "stamps:", names)
```
